```python
import torch

def _softmax(x, axis=-1):
    return torch.softmax(x, dim=axis)
def _gelu(x):
    return torch.nn.functional.gelu(x, approximate="tanh")
def _silu(x):
    return torch.nn.functional.silu(x)
def _sigmoid(x):
    return torch.sigmoid(x)
def _layernorm(x, axis=-1, eps=1e-5):
    m = x.mean(dim=axis, keepdim=True)
    v = x.var(dim=axis, keepdim=True, unbiased=False)
    return (x - m) / torch.sqrt(v + eps)
def _scatter_add(tgt, idx, src, axis=0):
    return tgt.clone().index_add_(axis, idx, src)
def _segment_sum(src, seg, n):
    out = torch.zeros((n,) + src.shape[1:], dtype=src.dtype)
    return out.index_add_(0, seg, src)
def _pad(x, pw):
    flat = tuple(v for pair in reversed(pw) for v in pair)
    return torch.nn.functional.pad(x, flat)

kernel_name = 'parallel_sum__sliding_block_cached__dense_activation_squared_relu__decode'

def setup_inputs():

    _w = (lambda a: (lambda t: t.to(torch.bfloat16) if t.is_floating_point() else t)(torch.as_tensor(a)))
    def _A_setup():
        B, Sq, D = 1, 1, 576
        Hq, Hkv, Sk, Dh = 32, 16, 65536, 128
        assert Hq % Hkv == 0, (Hq, Hkv)
        return {
            "x": _w((lambda *s: torch.randn(*s, dtype=torch.bfloat16) * 0.05)(B, Sq, D)),
            "k_cache": _w((lambda *s: torch.randn(*s, dtype=torch.bfloat16) * 3.2)(B, Hkv, Sk, Dh)),
            "v_cache": _w((lambda *s: torch.randn(*s, dtype=torch.bfloat16) * 3.2)(B, Hkv, Sk, Dh)),
            "wq": _w((lambda *s: torch.randn(*s, dtype=torch.bfloat16) * 3.2)(D, Hq * Dh) * (D ** -0.5)),
            "wo": _w((lambda *s: torch.randn(*s, dtype=torch.bfloat16) * 3.2)(Hq * Dh, D) * ((Hq * Dh) ** -0.5)),
        }
    _A_in = _A_setup()

    def _B_setup():
        B, S, D, F = 1, 1, 576, 4608
        return {
            "x": _w((lambda *s: torch.randn(*s, dtype=torch.bfloat16) * 0.05)(B, S, D)),
            "w1": _w((lambda *s: torch.randn(*s, dtype=torch.bfloat16) * 0.05)(D, F)),
            "b1": _w((lambda *s: torch.randn(*s, dtype=torch.bfloat16) * 0.8)(F)),
            "w2": _w((lambda *s: torch.randn(*s, dtype=torch.bfloat16) * 0.05)(F, D)),
            "b2": _w((lambda *s: torch.randn(*s, dtype=torch.bfloat16) * 3.2)(D)),
        }
    _B_in = _B_setup()

    return {
        "A_x": _A_in["x"],
        "A_k_cache": _A_in["k_cache"],
        "A_v_cache": _A_in["v_cache"],
        "A_wq": _A_in["wq"],
        "A_wo": _A_in["wo"],
        "B_x": _B_in["x"],
        "B_w1": _B_in["w1"],
        "B_b1": _B_in["b1"],
        "B_w2": _B_in["w2"],
        "B_b2": _B_in["b2"],
    }

def reference(A_x, A_k_cache, A_v_cache, A_wq, A_wo, B_x, B_w1, B_b1, B_w2, B_b2):
    def _A_ref(x, k_cache, v_cache, wq, wo):
        B, Sq, D = x.shape
        Hq, Dh = 32, 128
        Hkv, Sk = k_cache.shape[1], k_cache.shape[2]
        W = min(4096, max(256, Sk // 4))
        rep = Hq // Hkv
        q = (lambda x, *d: x.permute(*d))((x @ wq).reshape(B, Sq, Hq, Dh), 0, 2, 1, 3)
        k = (lambda x, n, axis: torch.repeat_interleave(x, n, dim=axis))(k_cache[:, :, Sk - W:, :], rep, axis=1)
        v = (lambda x, n, axis: torch.repeat_interleave(x, n, dim=axis))(v_cache[:, :, Sk - W:, :], rep, axis=1)
        scores = torch.einsum("bhqd,bhkd->bhqk", q, k) * (Dh ** -0.5)
        p = _softmax(scores, axis=-1)
        o = torch.einsum("bhqk,bhkd->bhqd", p, v)
        return (lambda x, *d: x.permute(*d))(o, 0, 2, 1, 3).reshape(B, Sq, Hq * Dh) @ wo

    def _B_ref(x, w1, b1, w2, b2):
        h = torch.einsum("bsd,df->bsf", x, w1) + b1
        zero = torch.zeros_like(h)
        r = torch.where(h > zero, h, zero)
        h = r * r
        out = torch.einsum("bsf,fd->bsd", h, w2) + b2
        return out

    x = A_x
    xn = _layernorm(x, axis=-1)
    return x + _A_ref(xn, A_k_cache, A_v_cache, A_wq, A_wo) + _B_ref(xn, B_w1, B_b1, B_w2, B_b2)
```

```python
import sys

KNAME = 'parallel_sum__sliding_block_cached__dense_activation_squared_relu__decode_kernel'

WS_EPOCH = 0
WS_Q = 0x10000
WS_H = 0x30000
WS_O = 0x50000
WS_M = 0x90000
WS_F = 0xA0000
F_STRIDE = 640
WS_STAMP = 0x100000
TAG_INC = 0x9E3779B9

L_XN = 0
L_QP = 2560
L_HP = L_QP + 2048
L_QL = L_HP + 1152
L_HL = L_QL + 512
L_TAG = L_HL + 640
L_OP = L_TAG + 64
L_ML = L_OP + 4096
L_FP = L_ML + 64
L_END = L_FP + 2304 + 512
assert L_QL % 16 == 0 and L_HL % 16 == 0 and L_OP % 16 == 0 and L_FP % 16 == 0

OOB = 0x7FF00000
LOG2E = 0x3FB8AA3B
SCALE = 0x3DB504F3
INV576 = 0x3AE38E39
EPS = 0x3727C5AC


class A:
    def __init__(self):
        self.L = []
        self.vm = []
        self.done = -1

    def e(self, s):
        self.L.append('  ' + s)

    def c(self, s):
        self.L.append('  ; ' + s)

    def label(self, s):
        self.L.append(s + ':')

    def nop(self, n):
        while n > 0:
            k = min(n, 16)
            self.e(f's_nop {k-1}')
            n -= k

    def vmem(self, name, text):
        self.e(text)
        self.vm.append(name)

    def wait(self, name):
        idx = len(self.vm) - 1 - self.vm[::-1].index(name)
        if idx <= self.done:
            return
        n = len(self.vm) - 1 - idx
        assert n <= 63, (name, n)
        self.e(f's_waitcnt vmcnt({n})')
        self.done = idx

    def wait_all(self):
        self.e('s_waitcnt vmcnt(0)')
        self.done = len(self.vm) - 1

    def inflight(self):
        return len(self.vm) - 1 - self.done

    def reset_vm(self):
        self.vm = []
        self.done = -1


def vr(b, n=4):
    return f'v[{b}:{b+n-1}]'


def gen(D=6, K0=4, stamps=False, ldf='nt', maxpoll=200000, prefetch_kb=16, wo_at_b3=4, stage=99):
    a = A()
    e = a.e
    nstamp = [0]

    def stamp():
        if stamps:
            k = nstamp[0]
            assert k < 14
            e(f's_memrealtime s[{66+2*k}:{67+2*k}]')
            nstamp[0] += 1

    S_X, S_WQ, S_W1, S_K, S_V, S_WO, S_W2, S_WS, S_B1, S_B2, S_OUT = 8, 12, 16, 20, 24, 28, 32, 36, 40, 44, 48

    def srd_tail(b, size):
        e(f's_mov_b32 s{b+2}, {size}')
        e(f's_mov_b32 s{b+3}, 0x20000')

    def srd(b):
        return f's[{b}:{b+3}]'

    sW = 3
    sH, sS, sRG, sCG = 52, 53, 54, 55
    sK, sV = 56, 57
    sWQ, sW1, sW2, sWO = 58, 59, 60, 61
    sT = 62
    sTMP, sTMP2 = 63, 64
    sEX = 94
    sSEL = 96
    sSA, sSB = 100, 101

    hdr = []
    hdr.append(f'; @launch grid=(256,1,1) block=(320,1,1) lds={L_END}')
    hdr.append('.amdgcn_target "amdgcn-amd-amdhsa--gfx950"')
    hdr.append('.text')
    hdr.append('.p2align 12')
    hdr.append(f'.globl {KNAME}')
    hdr.append('.p2align 8')
    hdr.append(f'.type {KNAME},@function')
    a.L += hdr
    a.label(KNAME)

    e('s_cmp_ge_u32 s2, 256')
    e('s_cbranch_scc1 L_end')
    stamp()
    e(f's_load_dwordx2 s[{S_X}:{S_X+1}], s[0:1], 0')
    e(f's_load_dwordx2 s[{S_WQ}:{S_WQ+1}], s[0:1], 24')
    e(f's_load_dwordx2 s[{S_W1}:{S_W1+1}], s[0:1], 48')
    e(f's_load_dwordx2 s[{S_K}:{S_K+1}], s[0:1], 8')
    e(f's_load_dwordx2 s[{S_V}:{S_V+1}], s[0:1], 16')
    e(f's_load_dwordx2 s[{S_WS}:{S_WS+1}], s[0:1], 96')
    e('v_lshrrev_b32 v1, 6, v0')
    e('v_and_b32 v0, 63, v0')
    e('v_readfirstlane_b32 s3, v1')
    srd_tail(S_X, 1152)
    srd_tail(S_WQ, 576*4096*2)
    srd_tail(S_W1, 576*4608*2)
    srd_tail(S_K, 16*65536*128*2)
    srd_tail(S_V, 16*65536*128*2)
    srd_tail(S_WS, 0x200000)
    e('s_and_b32 s4, s2, 7')
    e('s_lshr_b32 s5, s2, 3')
    e(f's_lshr_b32 s{sH}, s5, 4')
    e(f's_lshl_b32 s6, s4, 1')
    e(f's_add_u32 s{sH}, s{sH}, s6')
    e(f's_and_b32 s{sS}, s5, 15')
    e(f's_lshr_b32 s{sRG}, s5, 3')
    e(f's_lshl_b32 s6, s4, 2')
    e(f's_add_u32 s{sRG}, s{sRG}, s6')
    e(f's_and_b32 s{sCG}, s5, 7')
    e('v_lshrrev_b32 v1, 4, v0')
    e('v_and_b32 v2, 15, v0')
    e('s_cmp_eq_u32 s3, 4')
    e('s_cbranch_scc1 L_sync')

    vG, vI = 1, 2
    vM = [3, 4, 5, 6]
    vK, vV, vW1, vW2, vQ, vQ4, vXq, vXh, vT = 7, 8, 9, 10, 11, 12, 13, 14, 15
    R_WQ, R_W1 = 16, 36
    R_WO, R_W2 = 16, 48
    R_K, R_V = 84, 148
    XA, XB = 212, 216
    F = 218
    WQW = 228
    W1W = 72
    A0, A1 = 244, 248
    DACC = 252

    e('v_lshlrev_b32 v15, 4, v0')
    e('v_lshlrev_b32 v3, 2, v0')
    e('v_add_u32 v3, 1024, v3')
    e('v_lshrrev_b32 v4, 3, v0')
    e('v_lshlrev_b32 v11, 13, v4')
    e('v_and_b32 v5, 7, v0')
    e('v_lshl_add_u32 v11, v5, 4, v11')
    e(f's_lshr_b32 s4, s{sS}, 2')
    e('s_mul_i32 s4, s4, 144')
    e('s_mul_i32 s5, s3, 36')
    e('s_add_u32 s4, s4, s5')
    e(f's_lshl_b32 s{sWQ}, s4, 13')
    e(f's_lshl_b32 s6, s{sH}, 9')
    e(f's_add_u32 s{sWQ}, s{sWQ}, s6')
    e(f's_and_b32 s6, s{sS}, 3')
    e('s_lshl_b32 s6, s6, 7')
    e(f's_add_u32 s{sWQ}, s{sWQ}, s6')
    e('v_add_u32 v13, s4, v4')
    e('v_lshlrev_b32 v13, 2, v13')
    e('v_cmp_gt_u32 vcc, 32, v0')
    e(f'v_mov_b32 v6, {OOB}')
    e('s_waitcnt lgkmcnt(0)')
    e('v_cndmask_b32 v12, v6, v11, vcc')
    a.vmem('xa', f'buffer_load_dwordx4 {vr(XA)}, v15, {srd(S_X)}, 0 offen')
    a.vmem('xb', f'buffer_load_dword v{XB}, v3, {srd(S_X)}, 0 offen')
    for j in range(5):
        if j == 0:
            so = f's{sWQ}'
        else:
            e(f's_add_u32 s{sTMP}, s{sWQ}, {j*8*8192}')
            so = f's{sTMP}'
        va = vQ4 if j == 4 else vQ
        a.vmem(f'wq{j}', f'buffer_load_dwordx4 {vr(R_WQ+4*j)}, v{va}, {srd(S_WQ)}, {so} offen {ldf}')
    e(f's_load_dwordx2 s[{S_WO}:{S_WO+1}], s[0:1], 32')
    e(f's_load_dwordx2 s[{S_W2}:{S_W2+1}], s[0:1], 64')
    e(f's_load_dwordx2 s[{S_B2}:{S_B2+1}], s[0:1], 72')
    e(f's_load_dwordx2 s[{S_OUT}:{S_OUT+1}], s[0:1], 80')
    e('v_mul_u32_u24 v9, 9216, v1')
    e('v_lshl_add_u32 v9, v2, 4, v9')
    e('v_mul_u32_u24 v10, 1152, v1')
    e('v_lshl_add_u32 v10, v2, 4, v10')
    e('v_cmp_gt_u32 vcc, 9, v2')
    e(f's_lshr_b32 s5, s{sCG}, 1')
    e('s_mul_i32 s5, s5, 144')
    e('s_mul_i32 s6, s3, 36')
    e('s_add_u32 s5, s5, s6')
    e('v_cndmask_b32 v9, v6, v9, vcc')
    e('v_cndmask_b32 v10, v6, v10, vcc')
    e(f's_mul_i32 s{sW1}, s5, 9216')
    e(f's_mul_i32 s6, s{sRG}, 288')
    e(f's_add_u32 s{sW1}, s{sW1}, s6')
    e(f's_and_b32 s6, s{sCG}, 1')
    e('s_mul_i32 s6, s6, 144')
    e(f's_add_u32 s{sW1}, s{sW1}, s6')
    for j in range(9):
        if j == 0:
            so = f's{sW1}'
        else:
            e(f's_add_u32 s{sTMP}, s{sW1}, {j*4*9216}')
            so = f's{sTMP}'
        a.vmem(f'w1_{j}', f'buffer_load_dwordx4 {vr(R_W1+4*j)}, v{vW1}, {srd(S_W1)}, {so} offen {ldf}')
    e('v_add_u32 v14, s5, v1')
    e('v_lshlrev_b32 v14, 2, v14')
    e(f's_lshl_b32 s{sK}, s{sH}, 24')
    e(f's_add_u32 s{sK}, s{sK}, 0xF00000')
    e(f's_lshl_b32 s6, s{sS}, 16')
    e(f's_add_u32 s{sK}, s{sK}, s6')
    e('s_lshl_b32 s6, s3, 14')
    e(f's_add_u32 s{sK}, s{sK}, s6')
    e(f's_mul_i32 s6, s{sH}, 3')
    e(f's_add_u32 s6, s6, s{sS}')
    e('s_mul_i32 s7, s3, 5')
    e('s_add_u32 s6, s6, s7')
    e('s_and_b32 s7, s6, 3')
    e('s_lshl_b32 s7, s7, 12')
    e(f's_or_b32 s{sK}, s{sK}, s7')
    e('s_lshr_b32 s6, s6, 2')
    e('s_and_b32 s6, s6, 3')
    e('s_lshl_b32 s7, s6, 8')
    e(f's_or_b32 s{sV}, s{sK}, s7')
    e('v_xor_b32 v7, s6, v2')
    e('v_lshlrev_b32 v7, 8, v7')
    e('v_lshl_add_u32 v7, v1, 4, v7')
    e('v_lshlrev_b32 v8, 10, v1')
    e('v_lshl_add_u32 v8, v2, 4, v8')

    stream = []
    for T in range(4):
        for kk in range(4):
            stream.append(('K', T, kk))
    for T in range(4):
        for r in range(4):
            stream.append(('V', T, r))
    for j in range(8):
        stream.append(('O', j, 0))
    for j in range(9):
        stream.append(('W', j, 0))
    sp = [0]

    def issue_next():
        if sp[0] >= len(stream):
            return None
        kind, p, q = stream[sp[0]]
        sp[0] += 1
        if kind == 'K':
            if q == 0:
                e(f's_xor_b32 s65, s{sK}, {p << 12}')
            a.vmem(f'K{p}_{q}', f'buffer_load_dwordx4 {vr(R_K + 16*p + 4*q)}, v{vK}, {srd(S_K)}, s65 offen offset:{q*64} {ldf}')
        elif kind == 'V':
            e(f's_xor_b32 s{sTMP}, s{sV}, {(p << 12) | (q << 8)}')
            a.vmem(f'V{p}_{q}', f'buffer_load_dwordx4 {vr(R_V + 16*p + 4*q)}, v{vV}, {srd(S_V)}, s{sTMP} offen {ldf}')
        elif kind == 'O':
            if p == 0:
                so = f's{sWO}'
            else:
                e(f's_add_u32 s{sTMP}, s{sWO}, {p*4608}')
                so = f's{sTMP}'
            a.vmem(f'O{p}', f'buffer_load_dwordx4 {vr(R_WO + 4*p)}, v{vW2}, {srd(S_WO)}, {so} offen {ldf}')
        elif kind == 'W':
            if p == 0:
                so = f's{sW2}'
            else:
                e(f's_add_u32 s{sTMP}, s{sW2}, {p*4608}')
                so = f's{sTMP}'
            a.vmem(f'W{p}', f'buffer_load_dwordx4 {vr(R_W2 + 4*p)}, v{vW2}, {srd(S_W2)}, {so} offen {ldf}')
        return (kind, p, q)

    for _ in range(K0):
        issue_next()

    e('v_and_b32 v15, 1, v0')
    e('v_mov_b32 v3, 0xffff')
    e('v_lshlrev_b32 v15, 4, v15')
    e('v_lshlrev_b32 v15, v15, v3')
    e('v_bfe_u32 v6, v0, 1, 2')
    for r in range(4):
        e(f'v_cmp_eq_u32 vcc, {r}, v6')
        if r < 3:
            e('s_nop 1')
            e(f'v_cndmask_b32 v{vM[r]}, 0, v15, vcc')
        else:
            e('s_nop 1')
            e(f'v_cndmask_b32 v{vM[r]}, 0, v15, vcc')
    e('s_waitcnt lgkmcnt(0)')
    srd_tail(S_WO, 4096*576*2)
    srd_tail(S_W2, 4608*576*2)
    srd_tail(S_B2, 1152)
    srd_tail(S_OUT, 1152)
    e(f's_mul_i32 s6, s{sRG}, 144')
    e('s_mul_i32 s7, s3, 36')
    e('s_add_u32 s6, s6, s7')
    e(f's_mul_i32 s{sW2}, s6, 1152')
    e(f's_mul_i32 s7, s{sCG}, 144')
    e(f's_add_u32 s{sW2}, s{sW2}, s7')
    e(f's_lshl_b32 s6, s{sRG}, 7')
    e('s_lshl_b32 s65, s3, 5')
    e('s_add_u32 s6, s6, s65')
    e(f's_mul_i32 s{sWO}, s6, 1152')
    e(f's_add_u32 s{sWO}, s{sWO}, s7')
    assert K0 % 4 == 0

    def wave_sum(v, t):
        a.nop(2)
        e(f'v_add_f32_dpp v{v}, v{v}, v{v} quad_perm:[1,0,3,2] row_mask:0xf bank_mask:0xf')
        a.nop(2)
        e(f'v_add_f32_dpp v{v}, v{v}, v{v} quad_perm:[2,3,0,1] row_mask:0xf bank_mask:0xf')
        a.nop(2)
        e(f'v_add_f32_dpp v{v}, v{v}, v{v} row_half_mirror row_mask:0xf bank_mask:0xf')
        a.nop(2)
        e(f'v_add_f32_dpp v{v}, v{v}, v{v} row_mirror row_mask:0xf bank_mask:0xf')
        xor_swap_op(v, t, 16, 'v_add_f32')
        xor_swap_op(v, t, 32, 'v_add_f32')

    def xor_swap_op(v, t, which, op):
        e(f'v_mov_b32 v{t}, v{v}')
        a.nop(2)
        e(f'v_permlane{which}_swap_b32 v{v}, v{t}')
        a.nop(1)
        e(f'{op} v{v}, v{v}, v{t}')

    def div576(dst, src, t):
        e(f'v_mul_f32 v{dst}, {hex(INV576)}, v{src}')
        e(f'v_mov_b32 v{t}, 0x44100000')
        e(f'v_fma_f32 v{t}, -v{dst}, v{t}, v{src}')
        e(f'v_fmac_f32 v{dst}, {hex(INV576)}, v{t}')

    def rbf(dst, src):
        e(f'v_cvt_pk_bf16_f32 v{dst}, v{src}, v{src}')
        e(f'v_and_b32 v{dst}, 0xffff0000, v{dst}')

    a.wait('xb')
    stamp()
    for k in range(4):
        e(f'v_lshlrev_b32 v{F+2*k}, 16, v{XA+k}')
        e(f'v_and_b32 v{F+2*k+1}, 0xffff0000, v{XA+k}')
    e(f'v_lshlrev_b32 v{F+8}, 16, v{XB}')
    e(f'v_and_b32 v{F+9}, 0xffff0000, v{XB}')
    t0, t1, t2, t3 = 233, 234, 235, 236
    e(f'v_add_f32 v{t0}, v{F}, v{F+1}')
    e(f'v_add_f32 v{t1}, v{F+2}, v{F+3}')
    e(f'v_add_f32 v{t2}, v{F+4}, v{F+5}')
    e(f'v_add_f32 v{t3}, v{F+6}, v{F+7}')
    e(f'v_add_f32 v{t0}, v{t0}, v{t1}')
    e(f'v_add_f32 v{t2}, v{t2}, v{t3}')
    e(f'v_add_f32 v{t1}, v{F+8}, v{F+9}')
    e(f'v_add_f32 v{t0}, v{t0}, v{t2}')
    e(f'v_add_f32 v{t0}, v{t0}, v{t1}')
    wave_sum(t0, t1)
    vMU = 237
    div576(vMU, t0, t1)
    e('v_cmp_gt_u32 vcc, 32, v0')
    dd = 238
    e(f'v_sub_f32 v{dd}, v{F}, v{vMU}')
    e(f'v_mul_f32 v{t0}, v{dd}, v{dd}')
    for k in range(1, 8):
        e(f'v_sub_f32 v{dd}, v{F+k}, v{vMU}')
        e(f'v_fmac_f32 v{t0}, v{dd}, v{dd}')
    for k in (8, 9):
        e(f'v_sub_f32 v{dd}, v{F+k}, v{vMU}')
        e(f'v_cndmask_b32 v{dd}, 0, v{dd}, vcc')
        e(f'v_fmac_f32 v{t0}, v{dd}, v{dd}')
    wave_sum(t0, t1)
    div576(t2, t0, t1)
    rbf(t2, t2)
    e(f'v_add_f32 v{t2}, {hex(EPS)}, v{t2}')
    rbf(t2, t2)
    e(f'v_sqrt_f32 v{t2}, v{t2}')
    a.nop(1)
    rbf(t2, t2)
    e(f'v_rcp_f32 v{t3}, v{t2}')
    rbf(vMU, vMU)
    for k in range(10):
        e(f'v_sub_f32 v{F+k}, v{F+k}, v{vMU}')
    for k in range(0, 10, 2):
        e(f'v_cvt_pk_bf16_f32 v{dd}, v{F+k}, v{F+k+1}')
        e(f'v_lshlrev_b32 v{F+k}, 16, v{dd}')
        e(f'v_and_b32 v{F+k+1}, 0xffff0000, v{dd}')
    XO = 212
    OUT = 244
    for k in range(10):
        e(f'v_mul_f32 v{dd}, v{F+k}, v{t3}')
        e(f'v_fma_f32 v{t0}, -v{dd}, v{t2}, v{F+k}')
        e(f'v_fma_f32 v{dd}, v{t0}, v{t3}, v{dd}')
        e(f'v_cvt_pk_bf16_f32 v{OUT+k}, v{dd}, v{dd}')
    e('v_lshlrev_b32 v15, 5, v0')
    e(f'ds_write_b128 v15, {vr(OUT)} offset:{L_XN}')
    e(f'ds_write_b128 v15, {vr(OUT+4)} offset:{L_XN+16}')
    e('v_lshlrev_b32 v15, 3, v0')
    e(f'ds_write_b64 v15, v[{OUT+8}:{OUT+9}] offset:{L_XN+2048}')
    e('s_waitcnt lgkmcnt(0)')
    for j in range(5):
        e(f'ds_read_b32 v{WQW+j}, v{vXq} offset:{L_XN + j*32}')
    for j in range(9):
        e(f'ds_read_b32 v{W1W+j}, v{vXh} offset:{L_XN + j*16}')
    stamp()

    def diag_mfma(wreg, data, dacc, first, aset):
        for r in range(4):
            e(f'v_and_b32 v{aset+r}, v{wreg}, v{vM[r]}')
        a.nop(2)
        c = '0' if first else vr(dacc)
        e(f'v_mfma_f32_16x16x32_bf16 {vr(dacc)}, {vr(aset)}, {vr(data)}, {c}')

    e('s_waitcnt lgkmcnt(0)')
    for j in range(5):
        a.wait(f'wq{j}')
        diag_mfma(WQW + j, R_WQ + 4*j, DACC, j == 0, A0 if j % 2 == 0 else A1)
        issue_next()
    e('v_lshrrev_b32 v15, 3, v2')
    e('v_lshrrev_b32 v212, 1, v1')
    e('v_cmp_eq_u32 vcc, v15, v212')
    e('v_lshlrev_b32 v15, 8, v15')
    e('v_and_b32 v212, 7, v2')
    e('v_lshl_add_u32 v15, v212, 5, v15')
    e('v_and_b32 v212, 1, v1')
    e('v_lshl_add_u32 v15, v212, 4, v15')
    e('s_lshl_b32 s6, s3, 9')
    e('v_add_u32 v15, s6, v15')
    e(f's_and_saveexec_b64 s[{sEX}:{sEX+1}], vcc')
    a.nop(4)
    e(f'ds_write_b128 v15, {vr(DACC)} offset:{L_QP}')
    e(f's_mov_b64 exec, s[{sEX}:{sEX+1}]')
    e('s_waitcnt lgkmcnt(0)')
    e('s_barrier')
    stamp()
    for j in range(9):
        a.wait(f'w1_{j}')
        diag_mfma(W1W + j, R_W1 + 4*j, DACC, j == 0, A0 if j % 2 == 0 else A1)
        if j % 2 == 1:
            issue_next()
    e('v_cmp_gt_u32 vcc, 9, v2')
    e('v_cmp_gt_u32 s[4:5], 2, v1')
    e('v_lshlrev_b32 v15, 5, v2')
    e('v_lshl_add_u32 v15, v1, 4, v15')
    e('s_mul_i32 s6, s3, 288')
    e('s_and_b64 vcc, vcc, s[4:5]')
    e('v_add_u32 v212, s6, v15')
    e(f's_and_saveexec_b64 s[{sEX}:{sEX+1}], vcc')
    a.nop(4)
    e(f'ds_write_b128 v212, {vr(DACC)} offset:{L_HP}')
    e(f's_mov_b64 exec, s[{sEX}:{sEX+1}]')
    e('s_waitcnt lgkmcnt(0)')
    e('s_barrier')
    stamp()

    while sp[0] < 32:
        if a.inflight() >= D:
            idx = len(a.vm) - D
            a.wait(a.vm[idx])
        issue_next()
    stamp()
    e('s_barrier')
    stamp()
    QB = 212
    SC = 228
    e('v_lshrrev_b32 v15, 3, v2')
    e('v_lshlrev_b32 v15, 8, v15')
    e('v_lshl_add_u32 v15, v1, 4, v15')
    for kk in range(4):
        e(f'ds_read_b128 {vr(QB+4*kk)}, v15 offset:{L_QL + kk*64}')
    e('v_mov_b32 v15, 0')
    e(f'ds_read_b32 v{vT}, v15 offset:{L_TAG}')
    for _ in range(wo_at_b3):
        issue_next()
    a.wait('K3_3')
    e('s_waitcnt lgkmcnt(0)')
    for T in range(4):
        for kk in range(4):
            c = '0' if kk == 0 else vr(SC+4*T)
            e(f'v_mfma_f32_16x16x32_bf16 {vr(SC+4*T)}, {vr(R_K+16*T+4*kk)}, {vr(QB+4*kk)}, {c}')
    a.nop(8)
    tt = 212
    for T in range(4):
        for p in range(2):
            b = SC + 4*T + 2*p
            e(f'v_cvt_pk_bf16_f32 v{tt}, v{b}, v{b+1}')
            e(f'v_lshlrev_b32 v{b}, 16, v{tt}')
            e(f'v_and_b32 v{b+1}, 0xffff0000, v{tt}')
            e(f'v_mul_f32 v{b}, {hex(SCALE)}, v{b}')
            e(f'v_mul_f32 v{b+1}, {hex(SCALE)}, v{b+1}')
            e(f'v_cvt_pk_bf16_f32 v{tt}, v{b}, v{b+1}')
            e(f'v_lshlrev_b32 v{b}, 16, v{tt}')
            e(f'v_and_b32 v{b+1}, 0xffff0000, v{tt}')
    vMX, vL = 213, 214
    e(f'v_max3_f32 v{vMX}, v{SC}, v{SC+1}, v{SC+2}')
    for k in range(3, 15, 2):
        e(f'v_max3_f32 v{vMX}, v{vMX}, v{SC+k}, v{SC+k+1}')
    e(f'v_max_f32 v{vMX}, v{vMX}, v{SC+15}')
    xor_swap_op(vMX, tt, 16, 'v_max_f32')
    xor_swap_op(vMX, tt, 32, 'v_max_f32')
    for k in range(16):
        e(f'v_sub_f32 v{SC+k}, v{SC+k}, v{vMX}')
        e(f'v_mul_f32 v{SC+k}, {hex(LOG2E)}, v{SC+k}')
        e(f'v_exp_f32 v{SC+k}, v{SC+k}')
    e(f'v_add_f32 v{vL}, v{SC}, v{SC+1}')
    for k in range(2, 16):
        e(f'v_add_f32 v{vL}, v{vL}, v{SC+k}')
    xor_swap_op(vL, tt, 16, 'v_add_f32')
    xor_swap_op(vL, tt, 32, 'v_add_f32')
    stamp()
    for T in range(4):
        for r in range(4):
            n = 4*T + r
            e(f'v_cvt_pk_bf16_f32 v{tt}, v{SC+n}, v{SC+n}')
            aset = A0 if n % 2 == 0 else A1
            for q in range(4):
                e(f'v_and_b32 v{aset+q}, v{tt}, v{vM[q]}')
            a.wait(f'V{T}_{r}')
            a.nop(2)
            c = '0' if n == 0 else vr(DACC)
            e(f'v_mfma_f32_16x16x32_bf16 {vr(DACC)}, {vr(aset)}, {vr(R_V+16*T+4*r)}, {c}')
            issue_next()
    while issue_next() is not None:
        pass
    e('v_lshrrev_b32 v215, 1, v1')
    e('v_lshlrev_b32 v215, 9, v215')
    e('v_lshl_add_u32 v215, v2, 5, v215')
    e('v_and_b32 v216, 1, v1')
    e('v_lshl_add_u32 v215, v216, 4, v215')
    e('s_lshl_b32 s6, s3, 10')
    e('v_add_u32 v215, s6, v215')
    e('v_lshrrev_b32 v216, 3, v2')
    e('v_lshlrev_b32 v216, 3, v216')
    e('s_lshl_b32 s6, s3, 4')
    e('v_add_u32 v216, s6, v216')
    e(f'v_mov_b32 v218, v{vMX}')
    e(f'v_mov_b32 v219, v{vL}')
    a.nop(2)
    e(f'ds_write_b128 v215, {vr(DACC)} offset:{L_OP}')
    e('s_mov_b64 exec, 0x101')
    e(f'ds_write_b64 v216, v[218:219] offset:{L_ML}')
    e('s_mov_b64 exec, -1')
    e('s_waitcnt lgkmcnt(0)')
    stamp()
    e('s_barrier')
    e(f's_mov_b32 s{sSEL}, 0x07060500')
    e(f's_mov_b32 s{sSEL+1}, 0x07060501')
    e(f's_mov_b32 s{sSEL+2}, 0x07060502')
    e(f's_mov_b32 s{sSEL+3}, 0x07060503')
    e(f's_mov_b32 s{sSA}, 0x0c0c0400')
    e(f's_mov_b32 s{sSB}, 0x04000c0c')

    def embed(b):
        for k in range(4):
            e(f'v_perm_b32 v{b+k}, v{b+k}, v{vT}, s{sSEL+k}')

    def tagcheck(b, t_a, t_b, dst):
        e(f'v_perm_b32 v{t_a}, v{b+1}, v{b}, s{sSA}')
        e(f'v_perm_b32 v{t_b}, v{b+3}, v{b+2}, s{sSB}')
        e(f'v_or_b32 v{t_a}, v{t_a}, v{t_b}')
        e(f'v_cmp_ne_u32 {dst}, v{t_a}, v{vT}')

    e('s_cmp_lg_u32 s3, 0')
    e('s_cbranch_scc1 L_opoll')
    c0 = 212
    e('v_lshlrev_b32 v236, 4, v0')
    e('v_lshrrev_b32 v237, 5, v0')
    e('v_lshlrev_b32 v237, 3, v237')
    for w in range(4):
        e(f'ds_read_b64 v[{228+2*w}:{229+2*w}], v237 offset:{L_ML + 16*w}')
    for w in range(4):
        e(f'ds_read_b128 {vr(c0+4*w)}, v236 offset:{L_OP + 1024*w}')
    e('s_waitcnt lgkmcnt(4)')
    e('v_max3_f32 v238, v228, v230, v232')
    e('v_max_f32 v238, v238, v234')
    for w in range(4):
        e(f'v_sub_f32 v{228+2*w}, v{228+2*w}, v238')
    for w in range(4):
        e(f'v_mul_f32 v{228+2*w}, {hex(LOG2E)}, v{228+2*w}')
    for w in range(4):
        e(f'v_exp_f32 v{228+2*w}, v{228+2*w}')
    a.nop(1)
    e('v_mul_f32 v239, v228, v229')
    e('v_fmac_f32 v239, v230, v231')
    e('v_fmac_f32 v239, v232, v233')
    e('v_fmac_f32 v239, v234, v235')
    e('s_waitcnt lgkmcnt(0)')
    for k in range(4):
        e(f'v_mul_f32 v{240+k}, v228, v{c0+k}')
    for w in range(1, 4):
        for k in range(4):
            e(f'v_fmac_f32 v{240+k}, v{228+2*w}, v{c0+4*w+k}')
    embed(240)
    e(f's_lshl_b32 s6, s{sH}, 5')
    e(f's_add_u32 s6, s6, s{sS}')
    e('s_lshl_b32 s7, s6, 9')
    e(f's_add_u32 s7, s7, {WS_O}')
    e('v_lshrrev_b32 v237, 5, v0')
    e('v_lshlrev_b32 v237, 13, v237')
    e('v_and_b32 v236, 31, v0')
    e('v_lshl_add_u32 v237, v236, 4, v237')
    a.vmem('pubO', f'buffer_store_dwordx4 {vr(240)}, v237, {srd(S_WS)}, s7 offen sc1')
    e('v_mov_b32 v244, v238')
    e('v_mov_b32 v245, v239')
    e('v_mov_b32 v246, 0')
    e('v_mov_b32 v247, 0')
    embed(244)
    e('s_lshl_b32 s7, s6, 4')
    e(f's_add_u32 s7, s7, {WS_M}')
    e('v_lshrrev_b32 v237, 5, v0')
    e('v_lshlrev_b32 v237, 8, v237')
    e('s_mov_b32 exec_lo, 1')
    e('s_mov_b32 exec_hi, 1')
    a.vmem('pubM', f'buffer_store_dwordx4 {vr(244)}, v237, {srd(S_WS)}, s7 offen sc1')
    e('s_mov_b64 exec, -1')
    stamp_idx_pub = nstamp[0]
    a.label('L_opoll')
    stamp()
    G0, G1, GM0, GM1 = 212, 216, 220, 224
    e('v_lshrrev_b32 v228, 3, v0')
    e('v_and_b32 v229, 7, v0')
    e('v_lshlrev_b32 v230, 9, v228')
    e('v_lshl_add_u32 v230, v229, 4, v230')
    e('v_lshlrev_b32 v231, 4, v228')
    e(f's_lshl_b32 s6, s{sRG}, 13')
    e('s_lshl_b32 s7, s3, 7')
    e('s_add_u32 s6, s6, s7')
    e(f's_add_u32 s6, s6, {WS_O}')
    e('s_add_u32 s7, s6, 4096')
    e(f's_lshl_b32 s4, s{sRG}, 8')
    e(f's_add_u32 s4, s4, {WS_M}')
    e('s_mov_b32 s5, 0')
    e('s_mul_i32 s65, s3, 144')
    e('v_lshlrev_b32 v232, 2, v1')
    e('v_add_u32 v232, s65, v232')
    HW = 233
    for j in range(9):
        e(f'ds_read_b32 v{HW+j}, v232 offset:{L_HL + 16*j}')

    def opoll_loads():
        e(f'buffer_load_dwordx4 {vr(G0)}, v230, {srd(S_WS)}, s6 offen sc1')
        e(f'buffer_load_dwordx4 {vr(G1)}, v230, {srd(S_WS)}, s7 offen sc1')
        e(f'buffer_load_dwordx4 {vr(GM0)}, v231, {srd(S_WS)}, s4 offen sc1')
        e(f'buffer_load_dwordx4 {vr(GM1)}, v231, {srd(S_WS)}, s4 offen offset:128 sc1')
    opoll_loads()
    DB, DA = 252, 228
    e('s_waitcnt vmcnt(4) lgkmcnt(0)')
    stamp()
    for j in range(9):
        diag_mfma(HW + j, R_W2 + 4*j, DB, j == 0, A0 if j % 2 == 0 else A1)
    a.label('L_ocheck')
    e('s_waitcnt vmcnt(0)')
    tagcheck(G0, 242, 243, 'vcc')
    tagcheck(G1, 242, 243, 's[14:15]')
    e('s_or_b64 vcc, vcc, s[14:15]')
    tagcheck(GM0, 242, 243, 's[14:15]')
    e('s_or_b64 vcc, vcc, s[14:15]')
    tagcheck(GM1, 242, 243, 's[14:15]')
    e('s_or_b64 vcc, vcc, s[14:15]')
    e('s_cbranch_vccz L_odone')
    e('s_add_u32 s5, s5, 1')
    e(f's_cmp_gt_u32 s5, {maxpoll}')
    e('s_cbranch_scc1 L_odone')
    e('s_mov_b64 exec, vcc')
    opoll_loads()
    e('s_mov_b64 exec, -1')
    e('s_branch L_ocheck')
    a.label('L_odone')
    stamp()
    e(f'v_and_b32 v{GM0}, 0xffffff00, v{GM0}')
    e(f'v_and_b32 v{GM1}, 0xffffff00, v{GM1}')
    vMM = 242
    e(f'v_max_f32 v{vMM}, v{GM0}, v{GM1}')
    a.nop(2)
    e(f'v_max_f32_dpp v{vMM}, v{vMM}, v{vMM} row_ror:8 row_mask:0xf bank_mask:0xf')
    xor_swap_op(vMM, 243, 16, 'v_max_f32')
    xor_swap_op(vMM, 243, 32, 'v_max_f32')
    e(f'v_sub_f32 v{GM0}, v{GM0}, v{vMM}')
    e(f'v_sub_f32 v{GM1}, v{GM1}, v{vMM}')
    e(f'v_mul_f32 v{GM0}, {hex(LOG2E)}, v{GM0}')
    e(f'v_mul_f32 v{GM1}, {hex(LOG2E)}, v{GM1}')
    e(f'v_exp_f32 v{GM0}, v{GM0}')
    e(f'v_exp_f32 v{GM1}, v{GM1}')
    a.nop(1)
    e(f'v_mul_f32 v{GM0+1}, v{GM0}, v{GM0+1}')
    e(f'v_fmac_f32 v{GM0+1}, v{GM1}, v{GM1+1}')
    for k in range(4):
        e(f'v_mul_f32 v{G0+k}, v{GM0}, v{G0+k}')
        e(f'v_fmac_f32 v{G0+k}, v{GM1}, v{G1+k}')
    red = [GM0+1, G0, G0+1, G0+2, G0+3]
    a.nop(1)
    for v in red:
        e(f'v_add_f32_dpp v{v}, v{v}, v{v} row_ror:8 row_mask:0xf bank_mask:0xf')
    tmps = [G1, G1+1, G1+2, G1+3, GM1+2]
    for which in (16, 32):
        for v, t in zip(red, tmps):
            e(f'v_mov_b32 v{t}, v{v}')
        a.nop(1)
        for v, t in zip(red, tmps):
            e(f'v_permlane{which}_swap_b32 v{v}, v{t}')
        a.nop(1)
        for v, t in zip(red, tmps):
            e(f'v_add_f32 v{v}, v{v}, v{t}')
    e(f'v_rcp_f32 v{GM0+1}, v{GM0+1}')
    a.nop(1)
    for k in range(4):
        e(f'v_mul_f32 v{G0+k}, v{G0+k}, v{GM0+1}')
    for k in range(4):
        e(f'v_cvt_pk_bf16_f32 v{G0+k}, v{G0+k}, v{G0+k}')
    e('v_cmp_eq_u32 vcc, 1, v1')
    e('v_cmp_eq_u32 s[14:15], 2, v1')
    e('v_cmp_eq_u32 s[6:7], 3, v1')
    a.nop(1)
    e(f'v_cndmask_b32 v{G1}, v{G0}, v{G0+1}, vcc')
    e(f'v_cndmask_b32 v{G1}, v{G1}, v{G0+2}, s[14:15]')
    e(f'v_cndmask_b32 v{G1}, v{G1}, v{G0+3}, s[6:7]')
    a.nop(2)
    for j in range(8):
        aset = A0 if j % 2 == 0 else A1
        for r in range(4):
            e(f'v_and_b32_dpp v{aset+r}, v{G1}, v{vM[r]} row_newbcast:{j} row_mask:0xf bank_mask:0xf')
        a.nop(2)
        c = '0' if j == 0 else vr(DA)
        e(f'v_mfma_f32_16x16x32_bf16 {vr(DA)}, {vr(aset)}, {vr(R_WO + 4*j)}, {c}')
    e('v_cmp_gt_u32 vcc, 9, v2')
    e('v_cmp_gt_u32 s[14:15], 2, v1')
    e('v_lshlrev_b32 v212, 5, v2')
    e('v_lshl_add_u32 v212, v1, 4, v212')
    e('s_mul_i32 s6, s3, 576')
    e('s_and_b64 vcc, vcc, s[14:15]')
    e('v_add_u32 v212, s6, v212')
    e(f's_and_saveexec_b64 s[{sEX}:{sEX+1}], vcc')
    a.nop(3)
    e(f'ds_write_b128 v212, {vr(DA)} offset:{L_FP}')
    e(f'ds_write_b128 v212, {vr(DB)} offset:{L_FP + 288}')
    e(f's_mov_b64 exec, s[{sEX}:{sEX+1}]')
    e('s_waitcnt lgkmcnt(0)')
    e('s_barrier')
    stamp()
    e('s_cmp_eq_u32 s3, 1')
    e('s_cbranch_scc1 L_final')
    e('s_cmp_lg_u32 s3, 0')
    e('s_cbranch_scc1 L_fin_stamps')
    e('v_lshlrev_b32 v236, 4, v0')
    for w in range(4):
        e(f'ds_read_b128 {vr(212+4*w)}, v236 offset:{L_FP + 576*w}')
    e(f's_lshl_b32 s6, s{sCG}, 5')
    e(f's_add_u32 s6, s6, s{sRG}')
    e(f's_mul_i32 s6, s6, {F_STRIDE}')
    e(f's_add_u32 s6, s6, {WS_F}')
    e('s_waitcnt lgkmcnt(0)')
    for k in range(4):
        e(f'v_add_f32 v{212+k}, v{212+k}, v{216+k}')
        e(f'v_add_f32 v{220+k}, v{220+k}, v{224+k}')
    for k in range(4):
        e(f'v_add_f32 v{212+k}, v{212+k}, v{220+k}')
    embed(212)
    e('v_cmp_gt_u32 vcc, 36, v0')
    e(f's_and_saveexec_b64 s[{sEX}:{sEX+1}], vcc')
    e(f'buffer_store_dwordx4 {vr(212)}, v236, {srd(S_WS)}, s6 offen sc1')
    e(f's_mov_b64 exec, s[{sEX}:{sEX+1}]')
    e('s_branch L_fin_stamps')

    a.label('L_final')
    e('s_cmp_ge_u32 s2, 144')
    e('s_cbranch_scc1 L_fin_stamps')
    e('s_mul_i32 s4, s2, 3641')
    e('s_lshr_b32 s4, s4, 16')
    e('s_mul_i32 s5, s4, 18')
    e('s_sub_u32 s5, s2, s5')
    e(f's_mul_i32 s4, s4, {32*F_STRIDE}')
    e('s_lshl_b32 s5, s5, 4')
    e('s_add_u32 s4, s4, s5')
    e(f's_add_u32 s4, s4, {WS_F}')
    e('v_and_b32 v230, 31, v0')
    e(f'v_mul_u32_u24 v230, {F_STRIDE}, v230')
    e('v_lshrrev_b32 v231, 5, v0')
    e('v_mul_u32_u24 v231, 288, v231')
    e('v_add_u32 v230, v230, v231')
    e('s_lshl_b32 s5, s2, 3')
    e('v_mov_b32 v231, s5')
    e(f'buffer_load_dwordx2 v[220:221], v231, {srd(S_X)}, 0 offen')
    e(f'buffer_load_dwordx2 v[222:223], v231, {srd(S_B2)}, 0 offen')
    e('s_mov_b32 s5, 0')
    a.label('L_fpoll')
    e(f'buffer_load_dwordx4 {vr(212)}, v230, {srd(S_WS)}, s4 offen sc1')
    e('s_waitcnt vmcnt(0)')
    tagcheck(212, 242, 243, 'vcc')
    e('s_add_u32 s5, s5, 1')
    e(f's_cmp_gt_u32 s5, {maxpoll}')
    e('s_cbranch_scc1 L_fdone')
    e('s_and_b64 exec, exec, vcc')
    e('s_cbranch_execnz L_fpoll')
    a.label('L_fdone')
    e('s_mov_b64 exec, -1')
    stamp()
    red = [212, 213, 214, 215]
    for v in red:
        e(f'v_and_b32 v{v}, 0xffffff00, v{v}')
    for mode in ('quad_perm:[1,0,3,2]', 'quad_perm:[2,3,0,1]', 'row_half_mirror', 'row_mirror'):
        a.nop(1)
        for v in red:
            e(f'v_add_f32_dpp v{v}, v{v}, v{v} {mode} row_mask:0xf bank_mask:0xf')
    tm = [216, 217, 218, 219]
    for v, t in zip(red, tm):
        e(f'v_mov_b32 v{t}, v{v}')
    a.nop(1)
    for v, t in zip(red, tm):
        e(f'v_permlane16_swap_b32 v{v}, v{t}')
    a.nop(1)
    for v, t in zip(red, tm):
        e(f'v_add_f32 v{v}, v{v}, v{t}')
    for v, t in zip(red, tm):
        e(f'v_mov_b32 v{t}, v{v}')
    a.nop(1)
    for v, t in zip(red, tm):
        e(f'v_permlane32_swap_b32 v{v}, v{t}')
    a.nop(1)
    for p in range(2):
        v0_, v1_ = red[2*p], red[2*p+1]
        t0_, t1_ = tm[2*p], tm[2*p+1]
        e(f'v_cvt_pk_bf16_f32 v224, v{v0_}, v{v1_}')
        e(f'v_lshlrev_b32 v{v0_}, 16, v224')
        e(f'v_and_b32 v{v1_}, 0xffff0000, v224')
        e(f'v_cvt_pk_bf16_f32 v224, v{t0_}, v{t1_}')
        e(f'v_lshlrev_b32 v{t0_}, 16, v224')
        e(f'v_and_b32 v{t1_}, 0xffff0000, v224')
        e(f'v_lshlrev_b32 v225, 16, v{222+p}')
        e(f'v_and_b32 v226, 0xffff0000, v{222+p}')
        e(f'v_add_f32 v{t0_}, v{t0_}, v225')
        e(f'v_add_f32 v{t1_}, v{t1_}, v226')
        e(f'v_cvt_pk_bf16_f32 v224, v{t0_}, v{t1_}')
        e(f'v_lshlrev_b32 v{t0_}, 16, v224')
        e(f'v_and_b32 v{t1_}, 0xffff0000, v224')
        e(f'v_lshlrev_b32 v225, 16, v{220+p}')
        e(f'v_and_b32 v226, 0xffff0000, v{220+p}')
        e(f'v_add_f32 v{v0_}, v{v0_}, v225')
        e(f'v_add_f32 v{v1_}, v{v1_}, v226')
        e(f'v_cvt_pk_bf16_f32 v224, v{v0_}, v{v1_}')
        e(f'v_lshlrev_b32 v{v0_}, 16, v224')
        e(f'v_and_b32 v{v1_}, 0xffff0000, v224')
        e(f'v_add_f32 v{v0_}, v{v0_}, v{t0_}')
        e(f'v_add_f32 v{v1_}, v{v1_}, v{t1_}')
        e(f'v_cvt_pk_bf16_f32 v{228+p}, v{v0_}, v{v1_}')
    e('s_mov_b64 exec, 1')
    e(f'buffer_store_dwordx2 v[228:229], v231, {srd(S_OUT)}, 0 offen')
    e('s_cmp_lg_u32 s2, 0')
    e('s_cbranch_scc1 L_noepoch')
    e('v_mov_b32 v230, 0')
    e(f'buffer_store_dword v{vT}, v230, {srd(S_WS)}, 0 offen sc1')
    a.label('L_noepoch')
    e('s_mov_b64 exec, -1')
    e('s_branch L_fin_stamps')

    a.label('L_sync')
    a.reset_vm()
    saved_stamp = nstamp[0]
    nstamp[0] = 1
    e('s_setprio 3')
    e(f's_load_dwordx2 s[{S_B1}:{S_B1+1}], s[0:1], 56')
    srd_tail(S_B1, 4608*2)
    e('v_mov_b32 v3, 0')
    e('s_waitcnt lgkmcnt(0)')
    a.vmem('ep', f'buffer_load_dword v4, v3, {srd(S_WS)}, 0 offen sc1')
    e(f's_mul_i32 s4, s{sRG}, 288')
    e('v_lshlrev_b32 v5, 3, v0')
    e(f'v_mov_b32 v6, {OOB}')
    e('v_cmp_gt_u32 vcc, 36, v0')
    e('s_nop 1')
    e('v_cndmask_b32 v5, v6, v5, vcc')
    a.vmem('b1', f'buffer_load_dwordx2 v[8:9], v5, {srd(S_B1)}, s4 offen')
    if prefetch_kb:
        e('s_getpc_b64 s[6:7]')
        a.label('L_pcref')
        e(f's_sub_u32 s6, s6, (L_pcref - {KNAME})')
        e('s_subb_u32 s7, s7, 0')
        e(f's_lshr_b32 s5, s2, 3')
        e(f's_and_b32 s5, s5, {prefetch_kb-1}')
        e('s_lshl_b32 s5, s5, 10')
        e(f's_min_u32 s5, s5, (L_end + 4 - {KNAME} - 1024)')
        e('v_lshlrev_b32 v10, 4, v0')
        e('v_add_u32 v10, s5, v10')
        a.vmem('pf', f'global_load_dwordx4 v[100:103], v10, s[6:7]')
    a.wait('ep')
    e(f'v_add_u32 v{vT}, {hex(TAG_INC)}, v4')
    stamp()
    e(f'ds_write_b32 v3, v{vT} offset:{L_TAG}')
    e(f's_mov_b32 s{sSEL}, 0x07060500')
    e(f's_mov_b32 s{sSEL+1}, 0x07060501')
    e(f's_mov_b32 s{sSEL+2}, 0x07060502')
    e(f's_mov_b32 s{sSEL+3}, 0x07060503')
    e(f's_mov_b32 s{sSA}, 0x0c0c0400')
    e(f's_mov_b32 s{sSB}, 0x04000c0c')
    e('s_waitcnt lgkmcnt(0)')
    e('s_barrier')
    stamp()
    e('v_lshlrev_b32 v16, 3, v0')
    for p in range(8):
        e(f'ds_read_b64 v[{20+2*p}:{21+2*p}], v16 offset:{L_QP + 256*p}')
    e(f's_lshl_b32 s4, s{sH}, 4')
    e(f's_add_u32 s4, s4, s{sS}')
    e('s_lshl_b32 s4, s4, 9')
    e(f's_add_u32 s4, s4, {WS_Q}')
    e('v_lshlrev_b32 v17, 4, v0')
    e('s_waitcnt lgkmcnt(0)')
    for k in range(2):
        e(f'v_add_f32 v{20+k}, v{20+k}, v{22+k}')
        e(f'v_add_f32 v{24+k}, v{24+k}, v{26+k}')
        e(f'v_add_f32 v{28+k}, v{28+k}, v{30+k}')
        e(f'v_add_f32 v{32+k}, v{32+k}, v{34+k}')
        e(f'v_add_f32 v{20+k}, v{20+k}, v{24+k}')
        e(f'v_add_f32 v{28+k}, v{28+k}, v{32+k}')
        e(f'v_add_f32 v{20+k}, v{20+k}, v{28+k}')
    e('v_mov_b32 v22, v21')
    e(f'v_mov_b32 v21, v{vT}')
    e(f'v_mov_b32 v23, v{vT}')
    e('s_mov_b32 exec_hi, 0')
    a.vmem('pubQ', f'buffer_store_dwordx4 v[20:23], v17, {srd(S_WS)}, s4 offen sc1')
    e('s_mov_b32 exec_hi, -1')
    stamp()
    e('s_barrier')
    stamp()
    for w in range(4):
        e(f'ds_read_b128 {vr(24+4*w)}, v17 offset:{L_HP + 288*w}')
    e(f's_lshl_b32 s4, s{sRG}, 3')
    e(f's_add_u32 s4, s4, s{sCG}')
    e('s_lshl_b32 s4, s4, 9')
    e(f's_add_u32 s4, s4, {WS_H}')
    e('s_waitcnt lgkmcnt(0)')
    for k in range(4):
        e(f'v_add_f32 v{24+k}, v{24+k}, v{28+k}')
        e(f'v_add_f32 v{32+k}, v{32+k}, v{36+k}')
    for k in range(4):
        e(f'v_add_f32 v{24+k}, v{24+k}, v{32+k}')
    embed(24)
    e('s_mov_b64 exec, 0x3ffff')
    a.vmem('pubH', f'buffer_store_dwordx4 {vr(24)}, v17, {srd(S_WS)}, s4 offen sc1')
    e('s_mov_b64 exec, -1')
    stamp()
    e(f's_lshl_b32 s4, s{sH}, 13')
    e(f's_add_u32 s4, s4, {WS_Q}')
    for n in range(8):
        e(f's_add_u32 s{40+n}, s4, {(n & 3)*2048 + (n >> 2)*1024}')
    e('s_mov_b32 s5, 0')
    a.wait('b1')
    a.label('L_qpoll')
    for n in range(8):
        e(f'buffer_load_dwordx4 {vr(40+4*n)}, v17, {srd(S_WS)}, s{40+n} offen sc1')
    e('s_waitcnt vmcnt(0)')
    e(f'v_xor_b32 v18, v41, v{vT}')
    e(f'v_xor_b32 v19, v43, v{vT}')
    e('v_or_b32 v18, v18, v19')
    for n in range(1, 8):
        e(f'v_xor_b32 v19, v{41+4*n}, v{vT}')
        e(f'v_xor_b32 v20, v{43+4*n}, v{vT}')
        e('v_or3_b32 v18, v18, v19, v20')
    e('v_cmp_ne_u32 vcc, 0, v18')
    e('s_add_u32 s5, s5, 1')
    e(f's_cmp_gt_u32 s5, {maxpoll}')
    e('s_cbranch_scc1 L_qdone')
    e('s_and_b64 exec, exec, vcc')
    e('s_cbranch_execnz L_qpoll')
    a.label('L_qdone')
    e('s_mov_b64 exec, -1')
    stamp()
    for hd in range(2):
        b = 40 + 16*hd
        for k in (0, 2):
            e(f'v_add_f32 v{b+k}, v{b+k}, v{b+4+k}')
            e(f'v_add_f32 v{b+8+k}, v{b+8+k}, v{b+12+k}')
            e(f'v_add_f32 v{b+k}, v{b+k}, v{b+8+k}')
        e(f'v_cvt_pk_bf16_f32 v{20+hd}, v{b}, v{b+2}')
    e('v_lshlrev_b32 v16, 2, v0')
    e(f'ds_write_b32 v16, v20 offset:{L_QL}')
    e(f'ds_write_b32 v16, v21 offset:{L_QL + 256}')
    e('v_cmp_le_u32 vcc, 18, v0')
    e('v_mov_b32 v18, 0')
    e(f'v_mov_b32 v19, {512 - 288}')
    e('v_cndmask_b32 v18, v18, v19, vcc')
    e('v_add_u32 v18, v17, v18')
    e(f's_lshl_b32 s4, s{sRG}, 12')
    e(f's_add_u32 s4, s4, {WS_H}')
    for n in range(4):
        e(f's_add_u32 s{40+n}, s4, {n*1024}')
    e('s_mov_b32 s5, 0')
    e('s_mov_b32 exec_lo, -1'); e('s_mov_b32 exec_hi, 0xf')
    a.label('L_hpoll')
    for n in range(4):
        e(f'buffer_load_dwordx4 {vr(40+4*n)}, v18, {srd(S_WS)}, s{40+n} offen sc1')
    e('s_waitcnt vmcnt(0)')
    tagcheck(40, 20, 21, 'vcc')
    for n in range(1, 4):
        tagcheck(40+4*n, 20, 21, 's[14:15]')
        e('s_or_b64 vcc, vcc, s[14:15]')
    e('s_add_u32 s5, s5, 1')
    e(f's_cmp_gt_u32 s5, {maxpoll}')
    e('s_cbranch_scc1 L_hdone')
    e('s_and_b64 exec, exec, vcc')
    e('s_cbranch_execnz L_hpoll')
    a.label('L_hdone')
    e('s_mov_b32 exec_lo, -1'); e('s_mov_b32 exec_hi, 0xf')
    stamp()
    for k in range(4):
        e(f'v_and_b32 v{40+k}, 0xffffff00, v{40+k}')
        for n in range(1, 4):
            e(f'v_and_b32 v{40+4*n+k}, 0xffffff00, v{40+4*n+k}')
        e(f'v_add_f32 v{40+k}, v{40+k}, v{44+k}')
        e(f'v_add_f32 v{48+k}, v{48+k}, v{52+k}')
        e(f'v_add_f32 v{40+k}, v{40+k}, v{48+k}')
    for p in range(2):
        x0, x1 = 40+2*p, 41+2*p
        e(f'v_cvt_pk_bf16_f32 v20, v{x0}, v{x1}')
        e(f'v_lshlrev_b32 v{x0}, 16, v20')
        e(f'v_and_b32 v{x1}, 0xffff0000, v20')
        e(f'v_lshlrev_b32 v21, 16, v{8+p}')
        e(f'v_and_b32 v22, 0xffff0000, v{8+p}')
        e(f'v_add_f32 v{x0}, v{x0}, v21')
        e(f'v_add_f32 v{x1}, v{x1}, v22')
        e(f'v_cvt_pk_bf16_f32 v20, v{x0}, v{x1}')
        e(f'v_lshlrev_b32 v{x0}, 16, v20')
        e(f'v_and_b32 v{x1}, 0xffff0000, v20')
        e(f'v_max_f32 v{x0}, 0, v{x0}')
        e(f'v_max_f32 v{x1}, 0, v{x1}')
        e(f'v_mul_f32 v{x0}, v{x0}, v{x0}')
        e(f'v_mul_f32 v{x1}, v{x1}, v{x1}')
        e(f'v_cvt_pk_bf16_f32 v{x0}, v{x0}, v{x0}')
        e(f'v_cvt_pk_bf16_f32 v{x1}, v{x1}, v{x1}')
    e(f'ds_write_b128 v17, {vr(40)} offset:{L_HL}')
    e('s_mov_b64 exec, -1')
    e('s_waitcnt lgkmcnt(0)')
    e('s_barrier')
    stamp()
    nstamp[0] = max(nstamp[0], saved_stamp)

    a.label('L_fin_stamps')
    if stamps:
        e('s_waitcnt lgkmcnt(0)')
        e('s_mov_b64 exec, -1')
        e('v_mov_b32 v20, 0')
        for k in range(14):
            e(f'v_writelane_b32 v20, s{66+2*k}, {k}')
        e('s_lshl_b32 s4, s2, 3')
        e('s_add_u32 s4, s4, s3')
        e('s_lshl_b32 s4, s4, 6')
        e(f's_add_u32 s4, s4, {WS_STAMP}')
        e('v_lshlrev_b32 v21, 2, v0')
        e('s_mov_b64 exec, 0xffff')
        e(f'buffer_store_dword v20, v21, {srd(S_WS)}, s4 offen')
    a.label('L_end')
    e('s_endpgm')
    a.L.append('.section .rodata,"a"')
    a.L.append('.p2align 6')
    a.L.append(f'.amdhsa_kernel {KNAME}')
    a.L.append('  .amdhsa_next_free_vgpr 256')
    a.L.append('  .amdhsa_next_free_sgpr 102')
    a.L.append('  .amdhsa_accum_offset 256')
    a.L.append('  .amdhsa_group_segment_fixed_size 0')
    a.L.append('  .amdhsa_kernarg_size 104')
    a.L.append('  .amdhsa_user_sgpr_count 2')
    a.L.append('  .amdhsa_user_sgpr_kernarg_segment_ptr 1')
    a.L.append('  .amdhsa_system_sgpr_workgroup_id_x 1')
    a.L.append('.end_amdhsa_kernel')
    txt = '\n'.join(a.L) + '\n'
    return txt


if __name__ == '__main__':
    import argparse
    p = argparse.ArgumentParser()
    p.add_argument('-o', default='/dev/stdout')
    p.add_argument('--stamps', action='store_true')
    p.add_argument('-D', type=int, default=6)
    args = p.parse_args()
    open(args.o, 'w').write(gen(D=args.D, stamps=args.stamps))
```

```python
KNAME = 'parallel_sum__sliding_block_cached__dense_activation_squared_relu__decode_kernel'

WS_EPOCH = 0
WS_Q = 0x10000
WS_H = 0x30000
WS_O = 0x50000
WS_M = 0x90000
WS_F = 0xA0000
F_STRIDE = 640
WS_STAMP = 0x100000
TAG_INC = 0x9E3779B9

L_XN = 0
L_QP = 2560
L_HP = L_QP + 2048
L_QL = L_HP + 1152
L_HL = L_QL + 512
L_TAG = L_HL + 640
L_OP = L_TAG + 64
L_ML = L_OP + 4096
L_FP = L_ML + 64
L_END = L_FP + 2304 + 512

OOB = 0x7FF00000
LOG2E = 0x3FB8AA3B
SCALE = 0x3DB504F3
INV576 = 0x3AE38E39
EPS = 0x3727C5AC


class A:
    def __init__(self):
        self.L = []
        self.reset_vm()

    def reset_vm(self):
        self.vm = []
        self.wt = []
        self.done = -1

    def e(self, s):
        self.L.append('  ' + s)

    def label(self, s):
        self.L.append(s + ':')

    def nop(self, n):
        while n > 0:
            k = min(n, 16)
            self.e(f's_nop {k-1}')
            n -= k

    def vmem(self, name, text, w=0):
        self.e(text)
        self.vm.append(name)
        self.wt.append(w)

    def wait_idx(self, idx):
        if idx <= self.done:
            return
        n = len(self.vm) - 1 - idx
        assert n <= 63, n
        self.e(f's_waitcnt vmcnt({n})')
        self.done = idx

    def wait(self, name):
        self.wait_idx(len(self.vm) - 1 - self.vm[::-1].index(name))

    def inflight_bytes(self):
        return sum(self.wt[self.done+1:])

    def wait_bytes(self, limit):
        idx = self.done
        while sum(self.wt[idx+1:]) > limit:
            idx += 1
        self.wait_idx(idx)


def vr(b, n=4):
    return f'v[{b}:{b+n-1}]'


def gen(D=6, stamps=False, dbg=False, ldf='nt', maxpoll=200000, prefetch_kb=16,
        x_extra=2, b3_v=8, b3_extra=3, qk_extra=2, order='q1KV', klin=False, w0=6):
    a = A()
    e = a.e
    nstamp = [0]
    WIN = D * 1024

    def stamp():
        if stamps:
            k = nstamp[0]
            assert k < 14
            e(f's_memrealtime s[{66+2*k}:{67+2*k}]')
            nstamp[0] += 1

    S_X, S_WQ, S_W1, S_K, S_V, S_WO, S_W2, S_WS, S_B1, S_B2, S_OUT = 8, 12, 16, 20, 24, 28, 32, 36, 40, 44, 48

    def srd_tail(b, size):
        e(f's_mov_b32 s{b+2}, {size}')
        e(f's_mov_b32 s{b+3}, 0x20000')

    def srd(b):
        return f's[{b}:{b+3}]'

    sH, sS, sRG, sCG = 52, 53, 54, 55
    sK, sV = 56, 57
    sWQ, sW1, sW2, sWO = 58, 59, 60, 61
    sTMP = 63
    sKT = 65
    sEX = 94
    sSEL = 96
    sSA, sSB = 100, 101

    a.L += [f'; @launch grid=(256,1,1) block=(320,1,1) lds={L_END}',
            '.amdgcn_target "amdgcn-amd-amdhsa--gfx950"', '.text', '.p2align 12',
            f'.globl {KNAME}', '.p2align 8', f'.type {KNAME},@function']
    a.label(KNAME)

    e('s_cmp_ge_u32 s2, 256')
    e('s_cbranch_scc1 L_end')
    stamp()
    e(f's_load_dwordx2 s[{S_X}:{S_X+1}], s[0:1], 0')
    e(f's_load_dwordx2 s[{S_WQ}:{S_WQ+1}], s[0:1], 24')
    e(f's_load_dwordx2 s[{S_W1}:{S_W1+1}], s[0:1], 48')
    e(f's_load_dwordx2 s[{S_K}:{S_K+1}], s[0:1], 8')
    e(f's_load_dwordx2 s[{S_V}:{S_V+1}], s[0:1], 16')
    e(f's_load_dwordx2 s[{S_WS}:{S_WS+1}], s[0:1], 96')
    e('v_lshrrev_b32 v1, 6, v0')
    e('v_and_b32 v0, 63, v0')
    e('v_readfirstlane_b32 s3, v1')
    if dbg:
        for k in range(1, 14):
            e(f's_mov_b32 s{66+2*k}, 0')
    srd_tail(S_X, 1152)
    srd_tail(S_WQ, 576*4096*2)
    srd_tail(S_W1, 576*4608*2)
    srd_tail(S_K, 16*65536*128*2)
    srd_tail(S_V, 16*65536*128*2)
    srd_tail(S_WS, 0x200000)
    e('s_and_b32 s4, s2, 7')
    e('s_lshr_b32 s5, s2, 3')
    e(f's_lshr_b32 s{sH}, s5, 4')
    e(f's_lshl_b32 s6, s4, 1')
    e(f's_add_u32 s{sH}, s{sH}, s6')
    e(f's_and_b32 s{sS}, s5, 15')
    e(f's_lshr_b32 s{sRG}, s5, 3')
    e(f's_lshl_b32 s6, s4, 2')
    e(f's_add_u32 s{sRG}, s{sRG}, s6')
    e(f's_and_b32 s{sCG}, s5, 7')
    e('v_lshrrev_b32 v1, 4, v0')
    e('v_and_b32 v2, 15, v0')
    e('s_cmp_eq_u32 s3, 4')
    e('s_cbranch_scc1 L_sync')

    vM = [3, 4, 5, 6]
    vK, vV, vW1, vW2, vQ, vQ4, vXq, vXh, vT = 7, 8, 9, 10, 11, 12, 13, 14, 15
    R_WQ, R_W1 = 16, 36
    R_WO, R_W2 = 16, 48
    R_K, R_V = 84, 148
    XA, XB = 212, 216
    F = 218
    WQW = 228
    W1W = 72
    A0, A1 = 244, 248
    DACC = 252

    e('v_lshlrev_b32 v15, 4, v0')
    e('v_lshlrev_b32 v3, 2, v0')
    e('v_add_u32 v3, 1024, v3')
    e('v_lshrrev_b32 v4, 3, v0')
    e('v_lshlrev_b32 v11, 13, v4')
    e('v_and_b32 v5, 7, v0')
    e('v_lshl_add_u32 v11, v5, 4, v11')
    e(f's_lshr_b32 s4, s{sS}, 2')
    e('s_mul_i32 s4, s4, 144')
    e('s_mul_i32 s5, s3, 36')
    e('s_add_u32 s4, s4, s5')
    e(f's_lshl_b32 s{sWQ}, s4, 13')
    e(f's_lshl_b32 s6, s{sH}, 9')
    e(f's_add_u32 s{sWQ}, s{sWQ}, s6')
    e(f's_and_b32 s6, s{sS}, 3')
    e('s_lshl_b32 s6, s6, 7')
    e(f's_add_u32 s{sWQ}, s{sWQ}, s6')
    e('v_add_u32 v13, s4, v4')
    e('v_lshlrev_b32 v13, 2, v13')
    e('v_cmp_gt_u32 vcc, 32, v0')
    e(f'v_mov_b32 v6, {OOB}')
    e('s_waitcnt lgkmcnt(0)')
    e('v_cndmask_b32 v12, v6, v11, vcc')

    stream = [('q', j, 0) for j in range(5)]
    segs = {'1': [('1', j, 0) for j in range(9)],
            'K': [('K', T, kk) for T in range(4) for kk in range(4)],
            'V': [('V', T, r) for T in range(4) for r in range(4)]}
    for ch in order[1:]:
        stream += segs[ch]
    stream += [('O', j, 0) for j in range(8)] + [('W', j, 0) for j in range(9)]
    wts = {'q': 1024, '1': 576, 'K': 1024, 'V': 1024, 'O': 576, 'W': 576}
    sp = [0]

    def soff(base, off):
        if off == 0:
            return f's{base}'
        e(f's_add_u32 s{sTMP}, s{base}, {off}')
        return f's{sTMP}'

    def issue_next():
        if sp[0] >= len(stream):
            return None
        kind, p, q = stream[sp[0]]
        sp[0] += 1
        w = wts[kind]
        if kind == 'q':
            so = soff(sWQ, p*8*8192)
            va = vQ4 if p == 4 else vQ
            a.vmem(f'q{p}', f'buffer_load_dwordx4 {vr(R_WQ+4*p)}, v{va}, {srd(S_WQ)}, {so} offen {ldf}', w)
        elif kind == '1':
            so = soff(sW1, p*4*9216)
            a.vmem(f'1_{p}', f'buffer_load_dwordx4 {vr(R_W1+4*p)}, v{vW1}, {srd(S_W1)}, {so} offen {ldf}', w)
        elif kind == 'K':
            if q == 0:
                e(f's_xor_b32 s{sKT}, s{sK}, {p << 12}')
            a.vmem(f'K{p}_{q}', f'buffer_load_dwordx4 {vr(R_K + 16*p + 4*q)}, v{vK}, {srd(S_K)}, s{sKT} offen offset:{q*1024 if klin else q*64} {ldf}', w)
        elif kind == 'V':
            e(f's_xor_b32 s{sTMP}, s{sV}, {(p << 12) | (q << 8)}')
            a.vmem(f'V{p}_{q}', f'buffer_load_dwordx4 {vr(R_V + 16*p + 4*q)}, v{vV}, {srd(S_V)}, s{sTMP} offen {ldf}', w)
        elif kind == 'O':
            so = soff(sWO, p*4608)
            a.vmem(f'O{p}', f'buffer_load_dwordx4 {vr(R_WO + 4*p)}, v{vW2}, {srd(S_WO)}, {so} offen {ldf}', w)
        elif kind == 'W':
            so = soff(sW2, p*4608)
            a.vmem(f'W{p}', f'buffer_load_dwordx4 {vr(R_W2 + 4*p)}, v{vW2}, {srd(S_W2)}, {so} offen {ldf}', w)
        return stream[sp[0]-1]

    def nextw():
        return wts[stream[sp[0]][0]] if sp[0] < len(stream) else None

    def pump(limit):
        while sp[0] < len(stream) and a.inflight_bytes() + nextw() <= limit:
            issue_next()

    def pace_until(n_issued, limit):
        while sp[0] < n_issued:
            a.wait_bytes(limit - nextw())
            issue_next()

    def issue_n(n):
        for _ in range(n):
            issue_next()

    def idx_of(kind, p, q):
        return stream.index((kind, p, q))

    a.vmem('xa', f'buffer_load_dwordx4 {vr(XA)}, v15, {srd(S_X)}, 0 offen')
    a.vmem('xb', f'buffer_load_dword v{XB}, v3, {srd(S_X)}, 0 offen')
    issue_n(5)
    e(f's_load_dwordx2 s[{S_WO}:{S_WO+1}], s[0:1], 32')
    e(f's_load_dwordx2 s[{S_W2}:{S_W2+1}], s[0:1], 64')
    e(f's_load_dwordx2 s[{S_B2}:{S_B2+1}], s[0:1], 72')
    e(f's_load_dwordx2 s[{S_OUT}:{S_OUT+1}], s[0:1], 80')
    e('v_mul_u32_u24 v9, 9216, v1')
    e('v_lshl_add_u32 v9, v2, 4, v9')
    e('v_mul_u32_u24 v10, 1152, v1')
    e('v_lshl_add_u32 v10, v2, 4, v10')
    e('v_cmp_gt_u32 vcc, 9, v2')
    e(f's_lshr_b32 s5, s{sCG}, 1')
    e('s_mul_i32 s5, s5, 144')
    e('s_mul_i32 s6, s3, 36')
    e('s_add_u32 s5, s5, s6')
    e('v_cndmask_b32 v9, v6, v9, vcc')
    e('v_cndmask_b32 v10, v6, v10, vcc')
    e(f's_mul_i32 s{sW1}, s5, 9216')
    e(f's_mul_i32 s6, s{sRG}, 288')
    e(f's_add_u32 s{sW1}, s{sW1}, s6')
    e(f's_and_b32 s6, s{sCG}, 1')
    e('s_mul_i32 s6, s6, 144')
    e(f's_add_u32 s{sW1}, s{sW1}, s6')
    e('v_add_u32 v14, s5, v1')
    e('v_lshlrev_b32 v14, 2, v14')
    e(f's_lshl_b32 s{sK}, s{sH}, 24')
    e(f's_add_u32 s{sK}, s{sK}, 0xF00000')
    e(f's_lshl_b32 s6, s{sS}, 16')
    e(f's_add_u32 s{sK}, s{sK}, s6')
    e('s_lshl_b32 s6, s3, 14')
    e(f's_add_u32 s{sK}, s{sK}, s6')
    e(f's_mul_i32 s6, s{sH}, 3')
    e(f's_add_u32 s6, s6, s{sS}')
    e('s_mul_i32 s7, s3, 5')
    e('s_add_u32 s6, s6, s7')
    e('s_and_b32 s7, s6, 3')
    e('s_lshl_b32 s7, s7, 12')
    e(f's_or_b32 s{sK}, s{sK}, s7')
    e('s_lshr_b32 s6, s6, 2')
    e('s_and_b32 s6, s6, 3')
    e('s_lshl_b32 s7, s6, 8')
    e(f's_or_b32 s{sV}, s{sK}, s7')
    e('v_xor_b32 v7, s6, v2')
    e('v_lshlrev_b32 v7, 8, v7')
    e('v_lshl_add_u32 v7, v1, 4, v7')
    if klin:
        e('v_lshlrev_b32 v7, 4, v0')
    e('v_lshlrev_b32 v8, 10, v1')
    e('v_lshl_add_u32 v8, v2, 4, v8')
    pump(w0 * 1024)
    e('v_and_b32 v15, 1, v0')
    e('v_mov_b32 v3, 0xffff')
    e('v_lshlrev_b32 v15, 4, v15')
    e('v_lshlrev_b32 v15, v15, v3')
    e('v_bfe_u32 v6, v0, 1, 2')
    for r in range(4):
        e(f'v_cmp_eq_u32 vcc, {r}, v6')
        e('s_nop 1')
        e(f'v_cndmask_b32 v{vM[r]}, 0, v15, vcc')
    e('s_waitcnt lgkmcnt(0)')
    srd_tail(S_WO, 4096*576*2)
    srd_tail(S_W2, 4608*576*2)
    srd_tail(S_B2, 1152)
    srd_tail(S_OUT, 1152)
    e(f's_mul_i32 s6, s{sRG}, 144')
    e('s_mul_i32 s7, s3, 36')
    e('s_add_u32 s6, s6, s7')
    e(f's_mul_i32 s{sW2}, s6, 1152')
    e(f's_mul_i32 s7, s{sCG}, 144')
    e(f's_add_u32 s{sW2}, s{sW2}, s7')
    e(f's_lshl_b32 s6, s{sRG}, 7')
    e('s_lshl_b32 s4, s3, 5')
    e('s_add_u32 s6, s6, s4')
    e(f's_mul_i32 s{sWO}, s6, 1152')
    e(f's_add_u32 s{sWO}, s{sWO}, s7')

    def xor_swap_op(v, t, which, op):
        e(f'v_mov_b32 v{t}, v{v}')
        a.nop(2)
        e(f'v_permlane{which}_swap_b32 v{v}, v{t}')
        a.nop(1)
        e(f'{op} v{v}, v{v}, v{t}')

    def wave_sum(v, t):
        for mode in ('quad_perm:[1,0,3,2]', 'quad_perm:[2,3,0,1]', 'row_half_mirror', 'row_mirror'):
            a.nop(2)
            e(f'v_add_f32_dpp v{v}, v{v}, v{v} {mode} row_mask:0xf bank_mask:0xf')
        xor_swap_op(v, t, 16, 'v_add_f32')
        xor_swap_op(v, t, 32, 'v_add_f32')

    def div576(dst, src, t):
        e(f'v_mul_f32 v{dst}, {hex(INV576)}, v{src}')
        e(f'v_mov_b32 v{t}, 0x44100000')
        e(f'v_fma_f32 v{t}, -v{dst}, v{t}, v{src}')
        e(f'v_fmac_f32 v{dst}, {hex(INV576)}, v{t}')

    def rbf(dst, src):
        e(f'v_cvt_pk_bf16_f32 v{dst}, v{src}, v{src}')
        e(f'v_and_b32 v{dst}, 0xffff0000, v{dst}')

    def diag_mfma(wreg, data, dacc, first, aset):
        for r in range(4):
            e(f'v_and_b32 v{aset+r}, v{wreg}, v{vM[r]}')
        a.nop(2)
        c = '0' if first else vr(dacc)
        e(f'v_mfma_f32_16x16x32_bf16 {vr(dacc)}, {vr(aset)}, {vr(data)}, {c}')

    def sel_consts():
        for k in range(4):
            e(f's_mov_b32 s{sSEL+k}, {hex(0x07060500 + k)}')
        e(f's_mov_b32 s{sSA}, 0x0c0c0400')
        e(f's_mov_b32 s{sSB}, 0x04000c0c')

    def embed(b):
        for k in range(4):
            e(f'v_perm_b32 v{b+k}, v{b+k}, v{vT}, s{sSEL+k}')

    def tagcheck(b, t_a, t_b, dst):
        e(f'v_perm_b32 v{t_a}, v{b+1}, v{b}, s{sSA}')
        e(f'v_perm_b32 v{t_b}, v{b+3}, v{b+2}, s{sSB}')
        e(f'v_or_b32 v{t_a}, v{t_a}, v{t_b}')
        e(f'v_cmp_ne_u32 {dst}, v{t_a}, v{vT}')

    a.wait('xb')
    stamp()
    issue_n(x_extra)
    for k in range(4):
        e(f'v_lshlrev_b32 v{F+2*k}, 16, v{XA+k}')
        e(f'v_and_b32 v{F+2*k+1}, 0xffff0000, v{XA+k}')
    e(f'v_lshlrev_b32 v{F+8}, 16, v{XB}')
    e(f'v_and_b32 v{F+9}, 0xffff0000, v{XB}')
    t0, t1, t2, t3 = 233, 234, 235, 236
    e(f'v_add_f32 v{t0}, v{F}, v{F+1}')
    e(f'v_add_f32 v{t1}, v{F+2}, v{F+3}')
    e(f'v_add_f32 v{t2}, v{F+4}, v{F+5}')
    e(f'v_add_f32 v{t3}, v{F+6}, v{F+7}')
    e(f'v_add_f32 v{t0}, v{t0}, v{t1}')
    e(f'v_add_f32 v{t2}, v{t2}, v{t3}')
    e(f'v_add_f32 v{t1}, v{F+8}, v{F+9}')
    e(f'v_add_f32 v{t0}, v{t0}, v{t2}')
    e(f'v_add_f32 v{t0}, v{t0}, v{t1}')
    wave_sum(t0, t1)
    vMU = 237
    div576(vMU, t0, t1)
    e('v_cmp_gt_u32 vcc, 32, v0')
    dd = 238
    e(f'v_sub_f32 v{dd}, v{F}, v{vMU}')
    e(f'v_mul_f32 v{t0}, v{dd}, v{dd}')
    for k in range(1, 8):
        e(f'v_sub_f32 v{dd}, v{F+k}, v{vMU}')
        e(f'v_fmac_f32 v{t0}, v{dd}, v{dd}')
    for k in (8, 9):
        e(f'v_sub_f32 v{dd}, v{F+k}, v{vMU}')
        e(f'v_cndmask_b32 v{dd}, 0, v{dd}, vcc')
        e(f'v_fmac_f32 v{t0}, v{dd}, v{dd}')
    wave_sum(t0, t1)
    div576(t2, t0, t1)
    rbf(t2, t2)
    e(f'v_add_f32 v{t2}, {hex(EPS)}, v{t2}')
    rbf(t2, t2)
    e(f'v_sqrt_f32 v{t2}, v{t2}')
    a.nop(1)
    rbf(t2, t2)
    e(f'v_rcp_f32 v{t3}, v{t2}')
    rbf(vMU, vMU)
    for k in range(10):
        e(f'v_sub_f32 v{F+k}, v{F+k}, v{vMU}')
    for k in range(0, 10, 2):
        e(f'v_cvt_pk_bf16_f32 v{dd}, v{F+k}, v{F+k+1}')
        e(f'v_lshlrev_b32 v{F+k}, 16, v{dd}')
        e(f'v_and_b32 v{F+k+1}, 0xffff0000, v{dd}')
    OUT = 244
    for k in range(10):
        e(f'v_mul_f32 v{dd}, v{F+k}, v{t3}')
        e(f'v_fma_f32 v{t0}, -v{dd}, v{t2}, v{F+k}')
        e(f'v_fma_f32 v{dd}, v{t0}, v{t3}, v{dd}')
        e(f'v_cvt_pk_bf16_f32 v{OUT+k}, v{dd}, v{dd}')
    e('v_lshlrev_b32 v15, 5, v0')
    e(f'ds_write_b128 v15, {vr(OUT)} offset:{L_XN}')
    e(f'ds_write_b128 v15, {vr(OUT+4)} offset:{L_XN+16}')
    e('v_lshlrev_b32 v15, 3, v0')
    e(f'ds_write_b64 v15, v[{OUT+8}:{OUT+9}] offset:{L_XN+2048}')
    e('s_waitcnt lgkmcnt(0)')
    for j in range(5):
        e(f'ds_read_b32 v{WQW+j}, v{vXq} offset:{L_XN + j*32}')
    for j in range(9):
        e(f'ds_read_b32 v{W1W+j}, v{vXh} offset:{L_XN + j*16}')
    stamp()
    e('s_waitcnt lgkmcnt(0)')

    for j in range(5):
        a.wait(f'q{j}')
        pump(WIN)
        diag_mfma(WQW + j, R_WQ + 4*j, DACC, j == 0, A0 if j % 2 == 0 else A1)
    e('v_lshrrev_b32 v15, 3, v2')
    e('v_lshrrev_b32 v212, 1, v1')
    e('v_cmp_eq_u32 vcc, v15, v212')
    e('v_lshlrev_b32 v15, 8, v15')
    e('v_and_b32 v212, 7, v2')
    e('v_lshl_add_u32 v15, v212, 5, v15')
    e('v_and_b32 v212, 1, v1')
    e('v_lshl_add_u32 v15, v212, 4, v15')
    e('s_lshl_b32 s6, s3, 9')
    e('v_add_u32 v15, s6, v15')
    e(f's_and_saveexec_b64 s[{sEX}:{sEX+1}], vcc')
    a.nop(4)
    e(f'ds_write_b128 v15, {vr(DACC)} offset:{L_QP}')
    e(f's_mov_b64 exec, s[{sEX}:{sEX+1}]')
    e('s_waitcnt lgkmcnt(0)')
    e('s_barrier')
    stamp()

    def w1_product():
        for j in range(9):
            if idx_of('1', j, 0) >= sp[0]:
                pace_until(idx_of('1', j, 0) + 1, WIN)
            a.wait(f'1_{j}')
            pump(WIN)
            diag_mfma(W1W + j, R_W1 + 4*j, DACC, j == 0, A0 if j % 2 == 0 else A1)
        e('v_cmp_gt_u32 vcc, 9, v2')
        e('v_cmp_gt_u32 s[4:5], 2, v1')
        e('v_lshlrev_b32 v15, 5, v2')
        e('v_lshl_add_u32 v15, v1, 4, v15')
        e('s_mul_i32 s6, s3, 288')
        e('s_and_b64 vcc, vcc, s[4:5]')
        e('v_add_u32 v212, s6, v15')
        e(f's_and_saveexec_b64 s[{sEX}:{sEX+1}], vcc')
        a.nop(4)
        e(f'ds_write_b128 v212, {vr(DACC)} offset:{L_HP}')
        e(f's_mov_b64 exec, s[{sEX}:{sEX+1}]')
        e('s_waitcnt lgkmcnt(0)')
        pump(WIN + 1024)
        e('s_barrier')
        stamp()

    w1_product()

    pace_until(idx_of('V', 0, 0) + b3_v, WIN)
    a.wait('K3_3')
    issue_n(b3_extra)
    stamp()
    e('s_barrier')
    stamp()
    QB = 212
    SC = 228
    e('v_lshrrev_b32 v15, 3, v2')
    e('v_lshlrev_b32 v15, 8, v15')
    e('v_lshl_add_u32 v15, v1, 4, v15')
    for kk in range(4):
        e(f'ds_read_b128 {vr(QB+4*kk)}, v15 offset:{L_QL + kk*64}')
    e('v_mov_b32 v15, 0')
    e(f'ds_read_b32 v{vT}, v15 offset:{L_TAG}')
    e('s_waitcnt lgkmcnt(0)')
    for T in range(4):
        for kk in range(4):
            c = '0' if kk == 0 else vr(SC+4*T)
            e(f'v_mfma_f32_16x16x32_bf16 {vr(SC+4*T)}, {vr(R_K+16*T+4*kk)}, {vr(QB+4*kk)}, {c}')
    issue_n(qk_extra)
    a.nop(8)
    tt = 212
    for T in range(4):
        for p in range(2):
            b = SC + 4*T + 2*p
            e(f'v_cvt_pk_bf16_f32 v{tt}, v{b}, v{b+1}')
            e(f'v_lshlrev_b32 v{b}, 16, v{tt}')
            e(f'v_and_b32 v{b+1}, 0xffff0000, v{tt}')
            e(f'v_mul_f32 v{b}, {hex(SCALE)}, v{b}')
            e(f'v_mul_f32 v{b+1}, {hex(SCALE)}, v{b+1}')
            e(f'v_cvt_pk_bf16_f32 v{tt}, v{b}, v{b+1}')
            e(f'v_lshlrev_b32 v{b}, 16, v{tt}')
            e(f'v_and_b32 v{b+1}, 0xffff0000, v{tt}')
    vMX, vL = 213, 214
    e(f'v_max3_f32 v{vMX}, v{SC}, v{SC+1}, v{SC+2}')
    for k in range(3, 15, 2):
        e(f'v_max3_f32 v{vMX}, v{vMX}, v{SC+k}, v{SC+k+1}')
    e(f'v_max_f32 v{vMX}, v{vMX}, v{SC+15}')
    xor_swap_op(vMX, tt, 16, 'v_max_f32')
    xor_swap_op(vMX, tt, 32, 'v_max_f32')
    for k in range(16):
        e(f'v_sub_f32 v{SC+k}, v{SC+k}, v{vMX}')
        e(f'v_mul_f32 v{SC+k}, {hex(LOG2E)}, v{SC+k}')
        e(f'v_exp_f32 v{SC+k}, v{SC+k}')
    e(f'v_add_f32 v{vL}, v{SC}, v{SC+1}')
    for k in range(2, 16):
        e(f'v_add_f32 v{vL}, v{vL}, v{SC+k}')
    xor_swap_op(vL, tt, 16, 'v_add_f32')
    xor_swap_op(vL, tt, 32, 'v_add_f32')
    stamp()
    for T in range(4):
        for r in range(4):
            n = 4*T + r
            e(f'v_cvt_pk_bf16_f32 v{tt}, v{SC+n}, v{SC+n}')
            aset = A0 if n % 2 == 0 else A1
            for q in range(4):
                e(f'v_and_b32 v{aset+q}, v{tt}, v{vM[q]}')
            if idx_of('V', T, r) >= sp[0]:
                pace_until(idx_of('V', T, r) + 1, WIN)
            L0 = len(a.L)
            a.wait(f'V{T}_{r}')
            pump(WIN)
            if len(a.L) - L0 < 2:
                a.nop(2 - (len(a.L) - L0))
            c = '0' if n == 0 else vr(DACC)
            e(f'v_mfma_f32_16x16x32_bf16 {vr(DACC)}, {vr(aset)}, {vr(R_V+16*T+4*r)}, {c}')
    while issue_next() is not None:
        pass
    e('v_lshrrev_b32 v215, 1, v1')
    e('v_lshlrev_b32 v215, 9, v215')
    e('v_lshl_add_u32 v215, v2, 5, v215')
    e('v_and_b32 v216, 1, v1')
    e('v_lshl_add_u32 v215, v216, 4, v215')
    e('s_lshl_b32 s6, s3, 10')
    e('v_add_u32 v215, s6, v215')
    e('v_lshrrev_b32 v216, 3, v2')
    e('v_lshlrev_b32 v216, 3, v216')
    e('s_lshl_b32 s6, s3, 4')
    e('v_add_u32 v216, s6, v216')
    e(f'v_mov_b32 v218, v{vMX}')
    e(f'v_mov_b32 v219, v{vL}')
    a.nop(2)
    e(f'ds_write_b128 v215, {vr(DACC)} offset:{L_OP}')
    e('s_mov_b64 exec, 0x101')
    e(f'ds_write_b64 v216, v[218:219] offset:{L_ML}')
    e('s_mov_b64 exec, -1')
    e('s_waitcnt lgkmcnt(0)')
    stamp()
    e('s_barrier')
    sel_consts()
    stamp()
    G0, G1, GM0, GM1 = 212, 216, 220, 224
    e('v_lshrrev_b32 v228, 3, v0')
    e('v_and_b32 v229, 7, v0')
    e('v_lshlrev_b32 v230, 9, v228')
    e('v_lshl_add_u32 v230, v229, 4, v230')
    e('v_lshlrev_b32 v231, 4, v228')
    e(f's_lshl_b32 s6, s{sRG}, 13')
    e('s_lshl_b32 s7, s3, 7')
    e('s_add_u32 s6, s6, s7')
    e(f's_add_u32 s6, s6, {WS_O}')
    e('s_add_u32 s7, s6, 4096')
    e(f's_lshl_b32 s4, s{sRG}, 8')
    e(f's_add_u32 s4, s4, {WS_M}')
    e('s_mov_b32 s5, 0')
    e('s_mul_i32 s65, s3, 144')
    e('v_lshlrev_b32 v232, 2, v1')
    e('v_add_u32 v232, s65, v232')
    HW = 233
    for j in range(9):
        e(f'ds_read_b32 v{HW+j}, v232 offset:{L_HL + 16*j}')

    def opoll_loads():
        e(f'buffer_load_dwordx4 {vr(G0)}, v230, {srd(S_WS)}, s6 offen sc1')
        e(f'buffer_load_dwordx4 {vr(G1)}, v230, {srd(S_WS)}, s7 offen sc1')
        e(f'buffer_load_dwordx4 {vr(GM0)}, v231, {srd(S_WS)}, s4 offen sc1')
        e(f'buffer_load_dwordx4 {vr(GM1)}, v231, {srd(S_WS)}, s4 offen offset:128 sc1')
    opoll_loads()
    DB, DA = 252, 228
    e('s_waitcnt vmcnt(4) lgkmcnt(0)')
    stamp()
    for j in range(9):
        diag_mfma(HW + j, R_W2 + 4*j, DB, j == 0, A0 if j % 2 == 0 else A1)
    a.label('L_ocheck')
    e('s_waitcnt vmcnt(0)')
    tagcheck(G0, 242, 243, 'vcc')
    tagcheck(G1, 242, 243, 's[14:15]')
    e('s_or_b64 vcc, vcc, s[14:15]')
    tagcheck(GM0, 242, 243, 's[14:15]')
    e('s_or_b64 vcc, vcc, s[14:15]')
    tagcheck(GM1, 242, 243, 's[14:15]')
    e('s_or_b64 vcc, vcc, s[14:15]')
    e('s_cbranch_vccz L_odone')
    e('s_add_u32 s5, s5, 1')
    e(f's_cmp_gt_u32 s5, {maxpoll}')
    e('s_cbranch_scc1 L_odone')
    e('s_mov_b64 exec, vcc')
    opoll_loads()
    e('s_mov_b64 exec, -1')
    e('s_branch L_ocheck')
    a.label('L_odone')
    stamp()
    e(f'v_and_b32 v{GM0}, 0xffffff00, v{GM0}')
    e(f'v_and_b32 v{GM1}, 0xffffff00, v{GM1}')
    vMM = 242
    e(f'v_max_f32 v{vMM}, v{GM0}, v{GM1}')
    a.nop(2)
    e(f'v_max_f32_dpp v{vMM}, v{vMM}, v{vMM} row_ror:8 row_mask:0xf bank_mask:0xf')
    xor_swap_op(vMM, 243, 16, 'v_max_f32')
    xor_swap_op(vMM, 243, 32, 'v_max_f32')
    e(f'v_sub_f32 v{GM0}, v{GM0}, v{vMM}')
    e(f'v_sub_f32 v{GM1}, v{GM1}, v{vMM}')
    e(f'v_mul_f32 v{GM0}, {hex(LOG2E)}, v{GM0}')
    e(f'v_mul_f32 v{GM1}, {hex(LOG2E)}, v{GM1}')
    e(f'v_exp_f32 v{GM0}, v{GM0}')
    e(f'v_exp_f32 v{GM1}, v{GM1}')
    a.nop(1)
    e(f'v_mul_f32 v{GM0+1}, v{GM0}, v{GM0+1}')
    e(f'v_fmac_f32 v{GM0+1}, v{GM1}, v{GM1+1}')
    for k in range(4):
        e(f'v_mul_f32 v{G0+k}, v{GM0}, v{G0+k}')
        e(f'v_fmac_f32 v{G0+k}, v{GM1}, v{G1+k}')
    red = [GM0+1, G0, G0+1, G0+2, G0+3]
    a.nop(1)
    for v in red:
        e(f'v_add_f32_dpp v{v}, v{v}, v{v} row_ror:8 row_mask:0xf bank_mask:0xf')
    tmps = [G1, G1+1, G1+2, G1+3, GM1+2]
    for which in (16, 32):
        for v, t in zip(red, tmps):
            e(f'v_mov_b32 v{t}, v{v}')
        a.nop(1)
        for v, t in zip(red, tmps):
            e(f'v_permlane{which}_swap_b32 v{v}, v{t}')
        a.nop(1)
        for v, t in zip(red, tmps):
            e(f'v_add_f32 v{v}, v{v}, v{t}')
    e(f'v_rcp_f32 v{GM0+1}, v{GM0+1}')
    a.nop(1)
    for k in range(4):
        e(f'v_mul_f32 v{G0+k}, v{G0+k}, v{GM0+1}')
    for k in range(4):
        e(f'v_cvt_pk_bf16_f32 v{G0+k}, v{G0+k}, v{G0+k}')
    e('v_cmp_eq_u32 vcc, 1, v1')
    e('v_cmp_eq_u32 s[14:15], 2, v1')
    e('v_cmp_eq_u32 s[6:7], 3, v1')
    a.nop(1)
    e(f'v_cndmask_b32 v{G1}, v{G0}, v{G0+1}, vcc')
    e(f'v_cndmask_b32 v{G1}, v{G1}, v{G0+2}, s[14:15]')
    e(f'v_cndmask_b32 v{G1}, v{G1}, v{G0+3}, s[6:7]')
    a.nop(2)
    for j in range(8):
        aset = A0 if j % 2 == 0 else A1
        for r in range(4):
            e(f'v_and_b32_dpp v{aset+r}, v{G1}, v{vM[r]} row_newbcast:{j} row_mask:0xf bank_mask:0xf')
        a.nop(2)
        c = '0' if j == 0 else vr(DA)
        e(f'v_mfma_f32_16x16x32_bf16 {vr(DA)}, {vr(aset)}, {vr(R_WO + 4*j)}, {c}')
    e('v_cmp_gt_u32 vcc, 9, v2')
    e('v_cmp_gt_u32 s[14:15], 2, v1')
    e('v_lshlrev_b32 v212, 5, v2')
    e('v_lshl_add_u32 v212, v1, 4, v212')
    e('s_mul_i32 s6, s3, 576')
    e('s_and_b64 vcc, vcc, s[14:15]')
    e('v_add_u32 v212, s6, v212')
    e(f's_and_saveexec_b64 s[{sEX}:{sEX+1}], vcc')
    a.nop(3)
    e(f'ds_write_b128 v212, {vr(DA)} offset:{L_FP}')
    e(f'ds_write_b128 v212, {vr(DB)} offset:{L_FP + 288}')
    e(f's_mov_b64 exec, s[{sEX}:{sEX+1}]')
    e('s_waitcnt lgkmcnt(0)')
    e('s_barrier')
    stamp()
    e('s_cmp_lg_u32 s3, 1')
    e('s_cbranch_scc1 L_fin_stamps')
    e('s_cmp_ge_u32 s2, 144')
    e('s_cbranch_scc1 L_fin_stamps')
    e('s_mul_i32 s4, s2, 3641')
    e('s_lshr_b32 s4, s4, 16')
    e('s_mul_i32 s5, s4, 18')
    e('s_sub_u32 s5, s2, s5')
    e(f's_mul_i32 s4, s4, {32*F_STRIDE}')
    e('s_lshl_b32 s5, s5, 4')
    e('s_add_u32 s4, s4, s5')
    e(f's_add_u32 s4, s4, {WS_F}')
    e('v_and_b32 v230, 31, v0')
    e(f'v_mul_u32_u24 v230, {F_STRIDE}, v230')
    e('v_lshrrev_b32 v231, 5, v0')
    e('v_mul_u32_u24 v231, 288, v231')
    e('v_add_u32 v230, v230, v231')
    e('s_lshl_b32 s5, s2, 3')
    e('v_mov_b32 v231, s5')
    e(f'buffer_load_dwordx2 v[220:221], v231, {srd(S_X)}, 0 offen')
    e(f'buffer_load_dwordx2 v[222:223], v231, {srd(S_B2)}, 0 offen')
    e('s_mov_b32 s5, 0')
    a.label('L_fpoll')
    e(f'buffer_load_dwordx4 {vr(212)}, v230, {srd(S_WS)}, s4 offen sc1')
    e('s_waitcnt vmcnt(0)')
    tagcheck(212, 242, 243, 'vcc')
    e('s_add_u32 s5, s5, 1')
    e(f's_cmp_gt_u32 s5, {maxpoll}')
    e('s_cbranch_scc1 L_fdone')
    e('s_and_b64 exec, exec, vcc')
    e('s_cbranch_execnz L_fpoll')
    a.label('L_fdone')
    e('s_mov_b64 exec, -1')
    stamp()
    red = [212, 213, 214, 215]
    for v in red:
        e(f'v_and_b32 v{v}, 0xffffff00, v{v}')
    for mode in ('quad_perm:[1,0,3,2]', 'quad_perm:[2,3,0,1]', 'row_half_mirror', 'row_mirror'):
        a.nop(1)
        for v in red:
            e(f'v_add_f32_dpp v{v}, v{v}, v{v} {mode} row_mask:0xf bank_mask:0xf')
    tm = [216, 217, 218, 219]
    for v, t in zip(red, tm):
        e(f'v_mov_b32 v{t}, v{v}')
    a.nop(1)
    for v, t in zip(red, tm):
        e(f'v_permlane16_swap_b32 v{v}, v{t}')
    a.nop(1)
    for v, t in zip(red, tm):
        e(f'v_add_f32 v{v}, v{v}, v{t}')
    for v, t in zip(red, tm):
        e(f'v_mov_b32 v{t}, v{v}')
    a.nop(1)
    for v, t in zip(red, tm):
        e(f'v_permlane32_swap_b32 v{v}, v{t}')
    a.nop(1)
    for p in range(2):
        v0_, v1_ = red[2*p], red[2*p+1]
        t0_, t1_ = tm[2*p], tm[2*p+1]
        e(f'v_cvt_pk_bf16_f32 v224, v{v0_}, v{v1_}')
        e(f'v_lshlrev_b32 v{v0_}, 16, v224')
        e(f'v_and_b32 v{v1_}, 0xffff0000, v224')
        e(f'v_cvt_pk_bf16_f32 v224, v{t0_}, v{t1_}')
        e(f'v_lshlrev_b32 v{t0_}, 16, v224')
        e(f'v_and_b32 v{t1_}, 0xffff0000, v224')
        e(f'v_lshlrev_b32 v225, 16, v{222+p}')
        e(f'v_and_b32 v226, 0xffff0000, v{222+p}')
        e(f'v_add_f32 v{t0_}, v{t0_}, v225')
        e(f'v_add_f32 v{t1_}, v{t1_}, v226')
        e(f'v_cvt_pk_bf16_f32 v224, v{t0_}, v{t1_}')
        e(f'v_lshlrev_b32 v{t0_}, 16, v224')
        e(f'v_and_b32 v{t1_}, 0xffff0000, v224')
        e(f'v_lshlrev_b32 v225, 16, v{220+p}')
        e(f'v_and_b32 v226, 0xffff0000, v{220+p}')
        e(f'v_add_f32 v{v0_}, v{v0_}, v225')
        e(f'v_add_f32 v{v1_}, v{v1_}, v226')
        e(f'v_cvt_pk_bf16_f32 v224, v{v0_}, v{v1_}')
        e(f'v_lshlrev_b32 v{v0_}, 16, v224')
        e(f'v_and_b32 v{v1_}, 0xffff0000, v224')
        e(f'v_add_f32 v{v0_}, v{v0_}, v{t0_}')
        e(f'v_add_f32 v{v1_}, v{v1_}, v{t1_}')
        e(f'v_cvt_pk_bf16_f32 v{228+p}, v{v0_}, v{v1_}')
    e('s_mov_b64 exec, 1')
    e(f'buffer_store_dwordx2 v[228:229], v231, {srd(S_OUT)}, 0 offen')
    e('s_cmp_lg_u32 s2, 0')
    e('s_cbranch_scc1 L_noepoch')
    e('v_mov_b32 v230, 0')
    e(f'buffer_store_dword v{vT}, v230, {srd(S_WS)}, 0 offen sc1')
    a.label('L_noepoch')
    e('s_mov_b64 exec, -1')
    e('s_branch L_fin_stamps')

    a.label('L_sync')
    a.reset_vm()
    saved_stamp = nstamp[0]
    nstamp[0] = 1
    e('s_setprio 3')
    e(f's_load_dwordx2 s[{S_B1}:{S_B1+1}], s[0:1], 56')
    srd_tail(S_B1, 4608*2)
    e('v_mov_b32 v3, 0')
    e('s_waitcnt lgkmcnt(0)')
    a.vmem('ep', f'buffer_load_dword v4, v3, {srd(S_WS)}, 0 offen sc1')
    e(f's_mul_i32 s4, s{sRG}, 288')
    e('v_lshlrev_b32 v5, 3, v0')
    e(f'v_mov_b32 v6, {OOB}')
    e('v_cmp_gt_u32 vcc, 36, v0')
    e('s_nop 1')
    e('v_cndmask_b32 v5, v6, v5, vcc')
    a.vmem('b1', f'buffer_load_dwordx2 v[8:9], v5, {srd(S_B1)}, s4 offen')
    if prefetch_kb:
        e('s_getpc_b64 s[6:7]')
        a.label('L_pcref')
        e(f's_sub_u32 s6, s6, (L_pcref - {KNAME})')
        e('s_subb_u32 s7, s7, 0')
        e(f's_lshr_b32 s5, s2, 3')
        e(f's_and_b32 s5, s5, {prefetch_kb-1}')
        e('s_lshl_b32 s5, s5, 10')
        e(f's_min_u32 s5, s5, (L_end + 4 - {KNAME} - 1024)')
        e('v_lshlrev_b32 v10, 4, v0')
        e('v_add_u32 v10, s5, v10')
        a.vmem('pf', f'global_load_dwordx4 v[100:103], v10, s[6:7]')
    a.wait('ep')
    e(f'v_add_u32 v{vT}, {hex(TAG_INC)}, v4')
    stamp()
    e(f'ds_write_b32 v3, v{vT} offset:{L_TAG}')
    sel_consts()
    e('v_lshlrev_b32 v16, 3, v0')
    e('v_lshlrev_b32 v17, 4, v0')
    e('v_cmp_le_u32 vcc, 18, v0')
    e('v_mov_b32 v18, 0')
    e(f'v_mov_b32 v19, {512 - 288}')
    e('v_cndmask_b32 v18, v18, v19, vcc')
    e('v_add_u32 v18, v17, v18')
    e('s_waitcnt lgkmcnt(0)')
    e('s_barrier')
    stamp()
    for p in range(8):
        e(f'ds_read_b64 v[{20+2*p}:{21+2*p}], v16 offset:{L_QP + 256*p}')
    e(f's_lshl_b32 s4, s{sH}, 4')
    e(f's_add_u32 s4, s4, s{sS}')
    e('s_lshl_b32 s4, s4, 9')
    e(f's_add_u32 s4, s4, {WS_Q}')
    e('s_waitcnt lgkmcnt(0)')
    for k in range(2):
        e(f'v_add_f32 v{20+k}, v{20+k}, v{22+k}')
        e(f'v_add_f32 v{24+k}, v{24+k}, v{26+k}')
        e(f'v_add_f32 v{28+k}, v{28+k}, v{30+k}')
        e(f'v_add_f32 v{32+k}, v{32+k}, v{34+k}')
        e(f'v_add_f32 v{20+k}, v{20+k}, v{24+k}')
        e(f'v_add_f32 v{28+k}, v{28+k}, v{32+k}')
        e(f'v_add_f32 v{20+k}, v{20+k}, v{28+k}')
    e('v_mov_b32 v22, v21')
    e(f'v_mov_b32 v21, v{vT}')
    e(f'v_mov_b32 v23, v{vT}')
    e('s_mov_b32 exec_hi, 0')
    a.vmem('pubQ', f'buffer_store_dwordx4 v[20:23], v17, {srd(S_WS)}, s4 offen sc1')
    e('s_mov_b32 exec_hi, -1')
    stamp()
    e(f's_lshl_b32 s4, s{sH}, 13')
    e(f's_add_u32 s4, s4, {WS_Q}')
    QO = 20
    for n in range(8):
        e(f's_add_u32 s{QO+n}, s4, {(n & 3)*2048 + (n >> 2)*1024}')
    e(f's_lshl_b32 s4, s{sRG}, 12')
    e(f's_add_u32 s4, s4, {WS_H}')
    HO = 28
    for n in range(4):
        e(f's_add_u32 s{HO+n}, s4, {n*1024}')
    e('s_barrier')
    stamp()
    for w in range(4):
        e(f'ds_read_b128 {vr(24+4*w)}, v17 offset:{L_HP + 288*w}')
    e(f's_lshl_b32 s4, s{sRG}, 3')
    e(f's_add_u32 s4, s4, s{sCG}')
    e('s_lshl_b32 s4, s4, 9')
    e(f's_add_u32 s4, s4, {WS_H}')
    e('s_waitcnt lgkmcnt(0)')
    for k in range(4):
        e(f'v_add_f32 v{24+k}, v{24+k}, v{28+k}')
        e(f'v_add_f32 v{32+k}, v{32+k}, v{36+k}')
    for k in range(4):
        e(f'v_add_f32 v{24+k}, v{24+k}, v{32+k}')
    embed(24)
    e('s_mov_b64 exec, 0x3ffff')
    a.vmem('pubH', f'buffer_store_dwordx4 {vr(24)}, v17, {srd(S_WS)}, s4 offen sc1')
    e('s_mov_b64 exec, -1')
    stamp()
    QG, HG = 40, 104

    def qloads():
        for n in range(8):
            e(f'buffer_load_dwordx4 {vr(QG+4*n)}, v17, {srd(S_WS)}, s{QO+n} offen sc1')

    def hloads():
        for n in range(4):
            e(f'buffer_load_dwordx4 {vr(HG+4*n)}, v18, {srd(S_WS)}, s{HO+n} offen sc1')

    def hcheck():
        tagcheck(HG, 20, 21, 's[10:11]')
        for n in range(1, 4):
            tagcheck(HG+4*n, 20, 21, 's[14:15]')
            e('s_or_b64 s[10:11], s[10:11], s[14:15]')
        e('s_and_b32 s11, s11, 0xf')

    e('s_mov_b32 s5, 0')
    qloads()
    e('s_mov_b32 exec_hi, 0xf')
    hloads()
    e('s_mov_b32 exec_hi, -1')
    a.label('L_qcheck')
    e('s_waitcnt vmcnt(0)')
    e(f'v_xor_b32 v19, v{QG+1}, v{vT}')
    e(f'v_xor_b32 v20, v{QG+3}, v{vT}')
    e('v_or_b32 v19, v19, v20')
    for n in range(1, 8):
        e(f'v_xor_b32 v20, v{QG+1+4*n}, v{vT}')
        e(f'v_xor_b32 v21, v{QG+3+4*n}, v{vT}')
        e('v_or3_b32 v19, v19, v20, v21')
    e('v_cmp_ne_u32 vcc, 0, v19')
    hcheck()
    e('s_cbranch_vccz L_qdone')
    e('s_add_u32 s5, s5, 1')
    e(f's_cmp_gt_u32 s5, {maxpoll}')
    e('s_cbranch_scc1 L_qdone')
    e('s_mov_b64 exec, vcc')
    qloads()
    e('s_mov_b64 exec, s[10:11]')
    e('s_cbranch_execz L_qnoh')
    hloads()
    a.label('L_qnoh')
    e('s_mov_b64 exec, -1')
    e('s_branch L_qcheck')
    a.label('L_qdone')
    stamp()
    for hd in range(2):
        b = QG + 16*hd
        for k in (0, 2):
            e(f'v_add_f32 v{b+k}, v{b+k}, v{b+4+k}')
            e(f'v_add_f32 v{b+8+k}, v{b+8+k}, v{b+12+k}')
            e(f'v_add_f32 v{b+k}, v{b+k}, v{b+8+k}')
        e(f'v_cvt_pk_bf16_f32 v{20+hd}, v{b}, v{b+2}')
    e('v_lshlrev_b32 v19, 2, v0')
    e(f'ds_write_b32 v19, v20 offset:{L_QL}')
    e(f'ds_write_b32 v19, v21 offset:{L_QL + 256}')
    e('s_waitcnt lgkmcnt(0)')
    e('s_barrier')
    e('s_mov_b32 s5, 0')
    a.label('L_hloop')
    e('s_cmp_eq_u64 s[10:11], 0')
    e('s_cbranch_scc1 L_hdone')
    e('s_add_u32 s5, s5, 1')
    e(f's_cmp_gt_u32 s5, {maxpoll}')
    e('s_cbranch_scc1 L_hdone')
    e('s_mov_b64 exec, s[10:11]')
    hloads()
    e('s_mov_b64 exec, -1')
    e('s_waitcnt vmcnt(0)')
    hcheck()
    e('s_branch L_hloop')
    a.label('L_hdone')
    stamp()
    e('s_mov_b32 exec_hi, 0xf')
    for k in range(4):
        for n in range(4):
            e(f'v_and_b32 v{HG+4*n+k}, 0xffffff00, v{HG+4*n+k}')
        e(f'v_add_f32 v{HG+k}, v{HG+k}, v{HG+4+k}')
        e(f'v_add_f32 v{HG+8+k}, v{HG+8+k}, v{HG+12+k}')
        e(f'v_add_f32 v{HG+k}, v{HG+k}, v{HG+8+k}')
    for p in range(2):
        x0, x1 = HG+2*p, HG+1+2*p
        e(f'v_cvt_pk_bf16_f32 v20, v{x0}, v{x1}')
        e(f'v_lshlrev_b32 v{x0}, 16, v20')
        e(f'v_and_b32 v{x1}, 0xffff0000, v20')
        e(f'v_lshlrev_b32 v21, 16, v{8+p}')
        e(f'v_and_b32 v22, 0xffff0000, v{8+p}')
        e(f'v_add_f32 v{x0}, v{x0}, v21')
        e(f'v_add_f32 v{x1}, v{x1}, v22')
        e(f'v_cvt_pk_bf16_f32 v20, v{x0}, v{x1}')
        e(f'v_lshlrev_b32 v{x0}, 16, v20')
        e(f'v_and_b32 v{x1}, 0xffff0000, v20')
        e(f'v_max_f32 v{x0}, 0, v{x0}')
        e(f'v_max_f32 v{x1}, 0, v{x1}')
        e(f'v_mul_f32 v{x0}, v{x0}, v{x0}')
        e(f'v_mul_f32 v{x1}, v{x1}, v{x1}')
        e(f'v_cvt_pk_bf16_f32 v{x0}, v{x0}, v{x0}')
        e(f'v_cvt_pk_bf16_f32 v{x1}, v{x1}, v{x1}')
    e(f'ds_write_b128 v17, {vr(HG)} offset:{L_HL}')
    e('s_mov_b64 exec, -1')
    e(f's_lshl_b32 s6, s{sH}, 5')
    e(f's_add_u32 s6, s6, s{sS}')
    e('s_lshl_b32 s7, s6, 9')
    e(f's_add_u32 s7, s7, {WS_O}')
    e('s_lshl_b32 s6, s6, 4')
    e(f's_add_u32 s6, s6, {WS_M}')
    e('v_lshrrev_b32 v37, 5, v0')
    e('v_lshlrev_b32 v38, 13, v37')
    e('v_and_b32 v36, 31, v0')
    e('v_lshl_add_u32 v38, v36, 4, v38')
    e('v_lshlrev_b32 v39, 8, v37')
    e('v_lshlrev_b32 v37, 3, v37')
    e('s_waitcnt lgkmcnt(0)')
    e('s_barrier')
    stamp()
    c0 = 40
    for w in range(4):
        e(f'ds_read_b64 v[{56+2*w}:{57+2*w}], v37 offset:{L_ML + 16*w}')
    for w in range(4):
        e(f'ds_read_b128 {vr(c0+4*w)}, v17 offset:{L_OP + 1024*w}')
    e('s_waitcnt lgkmcnt(4)')
    e('v_max3_f32 v64, v56, v58, v60')
    e('v_max_f32 v64, v64, v62')
    for w in range(4):
        e(f'v_sub_f32 v{56+2*w}, v{56+2*w}, v64')
    for w in range(4):
        e(f'v_mul_f32 v{56+2*w}, {hex(LOG2E)}, v{56+2*w}')
    for w in range(4):
        e(f'v_exp_f32 v{56+2*w}, v{56+2*w}')
    a.nop(1)
    e('v_mul_f32 v65, v56, v57')
    e('v_fmac_f32 v65, v58, v59')
    e('v_fmac_f32 v65, v60, v61')
    e('v_fmac_f32 v65, v62, v63')
    e('v_mov_b32 v66, 0')
    e('v_mov_b32 v67, 0')
    e('s_waitcnt lgkmcnt(0)')
    for k in range(4):
        e(f'v_mul_f32 v{68+k}, v56, v{c0+k}')
    for w in range(1, 4):
        for k in range(4):
            e(f'v_fmac_f32 v{68+k}, v{56+2*w}, v{c0+4*w+k}')
    embed(68)
    e(f'buffer_store_dwordx4 {vr(68)}, v38, {srd(S_WS)}, s7 offen sc1')
    embed(64)
    e('s_mov_b32 exec_lo, 1')
    e('s_mov_b32 exec_hi, 1')
    e(f'buffer_store_dwordx4 {vr(64)}, v39, {srd(S_WS)}, s6 offen sc1')
    e('s_mov_b64 exec, -1')
    stamp()
    e(f's_lshl_b32 s6, s{sCG}, 5')
    e(f's_add_u32 s6, s6, s{sRG}')
    e(f's_mul_i32 s6, s6, {F_STRIDE}')
    e(f's_add_u32 s6, s6, {WS_F}')
    e('s_barrier')
    for w in range(4):
        e(f'ds_read_b128 {vr(40+4*w)}, v17 offset:{L_FP + 576*w}')
    e('s_waitcnt lgkmcnt(0)')
    for k in range(4):
        e(f'v_add_f32 v{40+k}, v{40+k}, v{44+k}')
        e(f'v_add_f32 v{48+k}, v{48+k}, v{52+k}')
    for k in range(4):
        e(f'v_add_f32 v{40+k}, v{40+k}, v{48+k}')
    embed(40)
    e('s_mov_b32 exec_hi, 0xf')
    e(f'buffer_store_dwordx4 {vr(40)}, v17, {srd(S_WS)}, s6 offen sc1')
    e('s_mov_b64 exec, -1')
    stamp()
    nstamp[0] = max(nstamp[0], saved_stamp)

    a.label('L_fin_stamps')
    if dbg:
        e('s_cmp_eq_u32 s3, 4')
        e('s_cbranch_scc1 L_end')
        e('s_cmp_lg_u32 s3, 1')
        e('s_cbranch_scc1 L_end')
        e('s_load_dwordx2 s[48:49], s[0:1], 88')
        e('s_waitcnt lgkmcnt(0)')
        e('s_mov_b32 s50, 256')
        e('s_mov_b32 s51, 0x20000')
        e('s_mov_b64 exec, -1')
        e('v_mov_b32 v20, 0')
        for k in range(14):
            e(f'v_writelane_b32 v20, s{66+2*k}, {k}')
        e('s_not_b32 s4, s66')
        e('v_writelane_b32 v20, s4, 14')
        e('v_lshlrev_b32 v21, 2, v0')
        e('s_mov_b64 exec, 0x7fff')
        e('buffer_atomic_umax v20, v21, s[48:51], 0 offen')
        e('s_waitcnt vmcnt(0)')
    elif stamps:
        e('s_waitcnt lgkmcnt(0)')
        e('s_mov_b64 exec, -1')
        e('v_mov_b32 v20, 0')
        for k in range(14):
            e(f'v_writelane_b32 v20, s{66+2*k}, {k}')
        e('s_lshl_b32 s4, s2, 3')
        e('s_add_u32 s4, s4, s3')
        e('s_lshl_b32 s4, s4, 6')
        e(f's_add_u32 s4, s4, {WS_STAMP}')
        e('v_lshlrev_b32 v21, 2, v0')
        e('s_mov_b64 exec, 0xffff')
        e(f'buffer_store_dword v20, v21, {srd(S_WS)}, s4 offen')
    a.label('L_end')
    e('s_endpgm')
    a.L += ['.section .rodata,"a"', '.p2align 6', f'.amdhsa_kernel {KNAME}',
            '  .amdhsa_next_free_vgpr 256', '  .amdhsa_next_free_sgpr 102', '  .amdhsa_accum_offset 256',
            '  .amdhsa_group_segment_fixed_size 0', '  .amdhsa_kernarg_size 104', '  .amdhsa_user_sgpr_count 2',
            '  .amdhsa_user_sgpr_kernarg_segment_ptr 1', '  .amdhsa_system_sgpr_workgroup_id_x 1',
            '.end_amdhsa_kernel']
    return '\n'.join(a.L) + '\n'


if __name__ == '__main__':
    import argparse
    p = argparse.ArgumentParser()
    p.add_argument('-o', default='/dev/stdout')
    p.add_argument('--opts', default='')
    args = p.parse_args()
    open(args.o, 'w').write(gen(**eval(f'dict({args.opts})')))
```
